```python
import torch

def _softmax(x, axis=-1):
    return torch.softmax(x, dim=axis)

def _gelu(x):
    return torch.nn.functional.gelu(x, approximate='tanh')

def _silu(x):
    return torch.nn.functional.silu(x)

def _sigmoid(x):
    return torch.sigmoid(x)

def _layernorm(x, axis=-1, eps=1e-05):
    m = x.mean(dim=axis, keepdim=True)
    v = x.var(dim=axis, keepdim=True, unbiased=False)
    return (x - m) / torch.sqrt(v + eps)

def _scatter_add(tgt, idx, src, axis=0):
    return tgt.clone().index_add_(axis, idx, src)

def _segment_sum(src, seg, n):
    out = torch.zeros((n,) + src.shape[1:], dtype=src.dtype)
    return out.index_add_(0, seg, src)

def _pad(x, pw):
    flat = tuple((v for pair in reversed(pw) for v in pair))
    return torch.nn.functional.pad(x, flat)
kernel_name = 'adaLN_cond__gqa_block_cached__dense_activation_silu__prompt'

def setup_inputs():

    _w = lambda a: (lambda t: t.to(torch.bfloat16) if t.is_floating_point() else t)(torch.as_tensor(a))

    def _A_setup():
        B, Sq, D = (1, 2048, 512)
        Hq, Hkv, Sk, Dh = (32, 32, 2048, 128)
        assert Hq % Hkv == 0, (Hq, Hkv)
        return {'x': _w((lambda *s: torch.randn(*s, dtype=torch.bfloat16) * 0.1)(B, Sq, D)), 'k_cache': _w((lambda *s: torch.randn(*s, dtype=torch.bfloat16) * 0.8)(B, Hkv, Sk, Dh)), 'v_cache': _w((lambda *s: torch.randn(*s, dtype=torch.bfloat16) * 3.2)(B, Hkv, Sk, Dh)), 'wq': _w((lambda *s: torch.randn(*s, dtype=torch.bfloat16) * 0.8)(D, Hq * Dh) * D ** (-0.5)), 'wo': _w((lambda *s: torch.randn(*s, dtype=torch.bfloat16) * 3.2)(Hq * Dh, D) * (Hq * Dh) ** (-0.5))}
    _A_in = _A_setup()

    def _B_setup():
        B, S, D, F = (1, 2048, 512, 1376)
        return {'x': _w((lambda *s: torch.randn(*s, dtype=torch.bfloat16) * 0.1)(B, S, D)), 'w1': _w((lambda *s: torch.randn(*s, dtype=torch.bfloat16) * 3.2)(D, F) * D ** (-0.5)), 'w2': _w((lambda *s: torch.randn(*s, dtype=torch.bfloat16) * 3.2)(F, D) * F ** (-0.5))}
    _B_in = _B_setup()
    return {'A_x': _A_in['x'], 'A_k_cache': _A_in['k_cache'], 'A_v_cache': _A_in['v_cache'], 'A_wq': _A_in['wq'], 'A_wo': _A_in['wo'], 'B_x': _B_in['x'], 'B_w1': _B_in['w1'], 'B_w2': _B_in['w2'], 'c': _w((lambda *s: torch.randn(*s, dtype=torch.bfloat16) * 0.2)(1, 512) * 8.0), 'w_mod': _w((lambda *s: torch.randn(*s, dtype=torch.bfloat16) * 0.2)(512, 6 * 512) * 512 ** (-0.5) * 8.0)}

def reference(A_x, A_k_cache, A_v_cache, A_wq, A_wo, B_x, B_w1, B_w2, c, w_mod):

    def _A_ref(x, k_cache, v_cache, wq, wo):
        B, Sq, D = x.shape
        Hq, Dh = (32, 128)
        Hkv = k_cache.shape[1]
        rep = Hq // Hkv
        q = (lambda x, *d: x.permute(*d))((x @ wq).reshape(B, Sq, Hq, Dh), 0, 2, 1, 3)
        k = (lambda x, n, axis: torch.repeat_interleave(x, n, dim=axis))(k_cache, rep, axis=1)
        v = (lambda x, n, axis: torch.repeat_interleave(x, n, dim=axis))(v_cache, rep, axis=1)
        scores = torch.einsum('bhqd,bhkd->bhqk', q, k) * Dh ** (-0.5)
        p = _softmax(scores, axis=-1)
        o = torch.einsum('bhqk,bhkd->bhqd', p, v)
        return (lambda x, *d: x.permute(*d))(o, 0, 2, 1, 3).reshape(B, Sq, Hq * Dh) @ wo

    def _B_ref(x, w1, w2):
        h = torch.einsum('bsd,df->bsf', x, w1)
        h = _silu(h)
        out = torch.einsum('bsf,fd->bsd', h, w2)
        return out
    x = A_x
    mod = (_silu(c) @ w_mod).reshape(c.shape[0], 6, 1, -1)
    sa, ca, ga, sb, cb, gb = (mod[:, 0].clone(), mod[:, 1].clone(), mod[:, 2].clone(), mod[:, 3].clone(), mod[:, 4].clone(), mod[:, 5].clone())
    h = _layernorm(x, axis=-1) * (1 + ca) + sa
    x = x + ga * _A_ref(h, A_k_cache, A_v_cache, A_wq, A_wo)
    h = _layernorm(x, axis=-1) * (1 + cb) + sb
    x = x + gb * _B_ref(h, B_w1, B_w2)
    return x
```

```python
def gen(name, mf, iters=64, zero=False, pre=[], waves=4):
    L = []
    A = L.append
    A(f"; @launch grid=(256,1,1) block=({waves*64},1,1) lds=0")
    A('.amdgcn_target "amdgcn-amd-amdhsa--gfx950"')
    A(".text\n.globl mb_kernel\n.p2align 8\n.type mb_kernel,@function\nmb_kernel:")
    A("s_load_dwordx4 s[4:7], s[0:1], 0")
    A("s_waitcnt lgkmcnt(0)")
    A(f"s_mov_b32 s8, s4\ns_mov_b32 s9, s5\ns_mov_b32 s10, {0 if zero else 0x4000000}\ns_mov_b32 s11, 0x20000")
    A("s_mov_b32 s12, s6\ns_mov_b32 s13, s7\ns_mov_b32 s14, 0x400000\ns_mov_b32 s15, 0x20000")
    A("v_and_b32 v1, 63, v0")
    A("v_lshrrev_b32 v2, 6, v0")
    A("s_nop 0")
    A("v_readfirstlane_b32 s20, v2")
    A("v_lshlrev_b32 v3, 4, v0")
    nr = 256 if waves == 4 else 128
    A("s_lshl_b32 s21, s2, 16")
    for r in range(16, nr, 4):
        A(f"s_add_u32 s22, s21, {r*1024}")
        A(f"buffer_load_dwordx4 v[{r}:{r+3}], v3, s[8:11], s22 offen")
    for r in range(0, nr, 4):
        A(f"s_add_u32 s22, s21, {r*1024+(1<<20)}")
        A(f"buffer_load_dwordx4 a[{r}:{r+3}], v3, s[8:11], s22 offen")
    A("s_waitcnt vmcnt(0)")
    for p in pre: A(p)
    A("s_barrier")
    A("s_mov_b32 s25, 0")
    A("s_memtime s[30:31]")
    A("s_memrealtime s[32:33]")
    A("s_waitcnt lgkmcnt(0)")
    A(".p2align 6")
    A("LOOP:")
    for m in mf: A(m)
    A("s_add_u32 s25, s25, 1")
    A(f"s_cmp_lt_u32 s25, {iters}")
    A("s_cbranch_scc1 LOOP")
    A("s_memtime s[34:35]")
    A("s_memrealtime s[36:37]")
    A("s_waitcnt lgkmcnt(0) vmcnt(0)")
    A("s_sub_u32 s34, s34, s30")
    A("s_sub_u32 s36, s36, s32")
    A("v_mov_b32 v8, s34\nv_mov_b32 v9, s36\nv_mov_b32 v10, 0\nv_mov_b32 v11, 0")
    A(f"s_mul_i32 s27, s2, {waves}")
    A("s_add_u32 s27, s27, s20")
    A("s_lshl_b32 s27, s27, 4")
    A("v_mov_b32 v12, s27")
    A("v_cmp_eq_u32 vcc, 0, v1")
    A("s_and_saveexec_b64 s[28:29], vcc")
    A("buffer_store_dwordx4 v[8:11], v12, s[12:15], 0 offen")
    A("s_waitcnt vmcnt(0)")
    A("s_endpgm")
    A('.section .rodata,"a"\n.p2align 6\n.amdhsa_kernel mb_kernel')
    A(f".amdhsa_next_free_vgpr {512 if waves==4 else 256}\n.amdhsa_next_free_sgpr 102\n.amdhsa_accum_offset {256 if waves==4 else 128}\n.amdhsa_group_segment_fixed_size 0\n.amdhsa_kernarg_size 16")
    A(".amdhsa_user_sgpr_count 2\n.amdhsa_user_sgpr_kernarg_segment_ptr 1\n.amdhsa_system_sgpr_workgroup_id_x 1\n.end_amdhsa_kernel")
    open(name, "w").write("\n".join(L) + "\n")

def r(f, b, n): return f"{f}[{b}:{b+n-1}]"
M32 = "v_mfma_f32_32x32x16_bf16"
M16 = "v_mfma_f32_16x16x32_bf16"
a = []
for ks in range(4):
    for dt in range(4):
        for qt in range(2):
            o=(dt*2+qt)*16
            a.append(f"{M32} {r('a',o,16)}, {r('v',64+4*(ks*4+dt),4)}, {r('v',128+4*(ks*2+qt),4)}, {r('a',o,16)}")
gen("mb2_a.s", a)
gen("mb2_a0.s", a, zero=True)
b = []
for dt in range(4):
    for qt in range(2):
        o=(dt*2+qt)*16
        for ks in range(4):
            b.append(f"{M32} {r('a',o,16)}, {r('v',64+4*(ks*4+dt),4)}, {r('v',128+4*(ks*2+qt),4)}, {r('a',o,16)}")
gen("mb2_b.s", b)
b2 = []
for ks in range(4):
    for qt in range(2):
        for dt in range(4):
            o=(dt*2+qt)*16
            b2.append(f"{M32} {r('a',o,16)}, {r('v',64+4*(ks*4+dt),4)}, {r('v',128+4*(ks*2+qt),4)}, {r('a',o,16)}")
gen("mb2_b2.s", b2)
c = []
for ks in range(2):
    for dt in range(8):
        for qt in range(4):
            o=(dt*4+qt)*4
            c.append(f"{M16} {r('a',o,4)}, {r('v',64+4*(ks*8+dt),4)}, {r('v',128+4*(ks*4+qt),4)}, {r('a',o,4)}")
gen("mb2_c.s", c)
gen("mb2_c0.s", c, zero=True)
d = []
for ks in range(2):
    for qt in range(4):
        for dt in range(8):
            o=(dt*4+qt)*4
            d.append(f"{M16} {r('a',o,4)}, {r('v',64+4*(ks*8+dt),4)}, {r('v',128+4*(ks*4+qt),4)}, {r('a',o,4)}")
gen("mb2_d.s", d)
e = []
for kt in range(4):
    for qt in range(4):
        o=(kt*4+qt)*4
        for ks in range(4):
            e.append(f"{M16} {r('a',o,4)}, {r('v',64+4*(kt*4+ks),4)}, {r('v',128+4*(ks*4+qt),4)}, {r('a',o,4)}")
gen("mb2_e.s", e)
pre = [f"v_and_b32 v{i}, 0x7fff7fff, v{i}" for i in range(128,160)]
gen("mb2_f.s", a, pre=pre)
gen("mb2_g.s", c, pre=pre)
```

```python
import gen_mb2 as g
def gen(name, mf, zero=False):
    L = []
    A = L.append
    waves=4
    A(f"; @launch grid=(256,1,1) block=({waves*64},1,1) lds=0")
    A('.amdgcn_target "amdgcn-amd-amdhsa--gfx950"')
    A(".text\n.globl mb_kernel\n.p2align 8\n.type mb_kernel,@function\nmb_kernel:")
    A("s_load_dwordx4 s[4:7], s[0:1], 0")
    A("s_waitcnt lgkmcnt(0)")
    A(f"s_mov_b32 s8, s4\ns_mov_b32 s9, s5\ns_mov_b32 s10, {0 if zero else 0x4000000}\ns_mov_b32 s11, 0x20000")
    A("s_mov_b32 s12, s6\ns_mov_b32 s13, s7\ns_mov_b32 s14, 0x400000\ns_mov_b32 s15, 0x20000")
    A("v_and_b32 v1, 63, v0")
    A("v_lshrrev_b32 v2, 6, v0")
    A("s_nop 0")
    A("v_readfirstlane_b32 s20, v2")
    A("v_lshlrev_b32 v3, 4, v0")
    nr = 256
    A("s_lshl_b32 s21, s2, 16")
    for r in range(16, nr, 4):
        A(f"s_add_u32 s22, s21, {r*1024}")
        A(f"buffer_load_dwordx4 v[{r}:{r+3}], v3, s[8:11], s22 offen")
    for r in range(0, nr, 4):
        A(f"s_add_u32 s22, s21, {r*1024+(1<<20)}")
        A(f"buffer_load_dwordx4 a[{r}:{r+3}], v3, s[8:11], s22 offen")
    A("s_waitcnt vmcnt(0)")
    A("s_barrier")
    A("s_mov_b32 s25, 0")
    A("v_mov_b32 v8, 0\nv_mov_b32 v9, 0")
    A(".p2align 6")
    A("LOOP:")
    A("s_memtime s[30:31]")
    A("s_memrealtime s[32:33]")
    for rep in range(4):
        for m in mf: A(m)
    A("s_waitcnt lgkmcnt(0)")
    A("s_mov_b32 m0, s25")
    A("s_nop 0")
    A("v_writelane_b32 v8, s30, m0")
    A("v_writelane_b32 v9, s32, m0")
    A("s_add_u32 s25, s25, 1")
    A(f"s_cmp_lt_u32 s25, 64")
    A("s_cbranch_scc1 LOOP")
    A(f"s_mul_i32 s27, s2, {waves}")
    A("s_add_u32 s27, s27, s20")
    A("s_lshl_b32 s27, s27, 9")
    A("v_lshlrev_b32 v12, 3, v1")
    A("v_add_u32 v12, s27, v12")
    A("buffer_store_dwordx2 v[8:9], v12, s[12:15], 0 offen")
    A("s_waitcnt vmcnt(0)")
    A("s_endpgm")
    A('.section .rodata,"a"\n.p2align 6\n.amdhsa_kernel mb_kernel')
    A(f".amdhsa_next_free_vgpr 512\n.amdhsa_next_free_sgpr 102\n.amdhsa_accum_offset 256\n.amdhsa_group_segment_fixed_size 0\n.amdhsa_kernarg_size 16")
    A(".amdhsa_user_sgpr_count 2\n.amdhsa_user_sgpr_kernarg_segment_ptr 1\n.amdhsa_system_sgpr_workgroup_id_x 1\n.end_amdhsa_kernel")
    open(name, "w").write("\n".join(L) + "\n")
gen("mb3_a.s", g.a)
gen("mb3_a0.s", g.a, zero=True)
gen("mb3_e.s", g.e)
```

```python
from dsl import *
NAME = "adaLN_cond__gqa_block_cached__dense_activation_silu__prompt"
KA_X, KA_K, KA_V, KA_WQ, KA_WO, KA_BX, KA_W1, KA_W2, KA_C, KA_WMOD, KA_OUT, KA_DBG, KA_WS = [8*i for i in range(13)]
WS_MOD  = 0x0
WS_H    = 0x100000
WS_O    = 0x400000
WS_PART = 0x1400000
WS_X1   = 0x2400000
WS_H2   = 0x2800000
WS_U    = 0x2A00000
LOG2E = 1.4426950408889634
import struct
def f2u(x): return struct.unpack("<I", struct.pack("<f", x))[0]
def hexf(x): return "0x%08x" % f2u(x)

def header(p, label):
    p(".p2align 8")
    p(f".globl {label}")
    p(f".type {label},@function")
    p(f"{label}:")

def descriptor(label, vgpr, sgpr=96, accum=None):
    if STAMPS: sgpr = 102
    accum = accum if accum is not None else min(256, (vgpr + 3) // 4 * 4)
    return f""".p2align 6
.amdhsa_kernel {label}
  .amdhsa_next_free_vgpr {vgpr}
  .amdhsa_next_free_sgpr {sgpr}
  .amdhsa_accum_offset {accum}
  .amdhsa_group_segment_fixed_size 0
  .amdhsa_kernarg_size 104
  .amdhsa_user_sgpr_count 2
  .amdhsa_user_sgpr_kernarg_segment_ptr 1
  .amdhsa_system_sgpr_workgroup_id_x 1
.end_amdhsa_kernel
"""

def srd(p, d, base, nbytes, add_lo=None):
    if add_lo is None and d == base:
        pass
    elif add_lo is None:
        p(f"s_mov_b32 s{d}, s{base}")
        p(f"s_mov_b32 s{d+1}, s{base+1}")
    else:
        p(f"s_add_u32 s{d}, s{base}, {add_lo}")
        p(f"s_addc_u32 s{d+1}, s{base+1}, 0")
    p(f"s_mov_b32 s{d+2}, {nbytes}")
    p(f"s_mov_b32 s{d+3}, 0x20000")

def xlane_reduce(p, op, regs_, tmp):
    for sw in ("v_permlane32_swap_b32", "v_permlane16_swap_b32"):
        for r, t in zip(regs_, tmp): p(f"v_mov_b32 v{t}, v{r}")
        if len(regs_) < 3: p(f"s_nop {2 - len(regs_)}")
        k = 0
        for r, t in zip(regs_, tmp):
            if len(regs_) >= 3 or k == 0 or True:
                pass
            p(f"{sw} v{r}, v{t}")
            k += 1
        for r, t in zip(regs_, tmp): p(f"{op} v{r}, v{r}, v{t}")

STAMPS = 0
WS_STAMP = 0x3800000
WS_FLAG = 0x20000
def stamp(p, i):
    if STAMPS:
        p(f"{'s_memrealtime' if STAMPS == 1 else 's_memtime'} s[{64+2*i}:{65+2*i}]")
def stamp_begin(p):
    if STAMPS:
        for i in range(64, 96): p(f"s_mov_b32 s{i}, 0")
        stamp(p, 0)
        p("s_mov_b32 s99, s2")
        p(f"s_load_dwordx2 s[96:97], s[0:1], {KA_WS}")
def stamp_end(p, kidx, last=15):
    if STAMPS:
        p("s_waitcnt vmcnt(0)")
        stamp(p, last)
        p("s_waitcnt lgkmcnt(0)")
        p("s_mov_b64 exec, -1")
        p("v_cmp_eq_u32 s[100:101], 0, v0")
        p("s_and_saveexec_b64 s[100:101], s[100:101]")
        p(f"s_cbranch_execz L_stamp_skip{kidx}")
        p("s_lshl_b32 s99, s99, 6")
        p(f"s_add_u32 s99, s99, {WS_STAMP + kidx*65536}")
        p("s_add_u32 s96, s96, s99")
        p("s_addc_u32 s97, s97, 0")
        for i in range(16): p(f"v_mov_b32 v{4+i}, s{64+2*i}")
        p("v_mov_b32 v2, 0")
        for i in range(4): p(f"global_store_dwordx4 v2, v[{4+4*i}:{7+4*i}], s[96:97] offset:{16*i}")
        p(f"L_stamp_skip{kidx}:")

def emit_gaps(p, mf, sal, mem, val):
    for g in range(len(mf)):
        p(mf[g])
        for x in sal[g] + mem[g] + val[g]: p(x)

def pack_gaps(NG, mems, valus, mem_lo=0, mem_hi=None, val_lo=0, val_hi=None):
    sal = [[] for _ in range(NG)]; mem = [[] for _ in range(NG)]; val = [[] for _ in range(NG)]
    cost = [0]*NG
    mem_hi = NG if mem_hi is None else mem_hi
    val_hi = NG if val_hi is None else val_hi
    for k, (sl, ins, c) in enumerate(mems):
        g = mem_lo + (k * (mem_hi - mem_lo)) // len(mems)
        if sl:
            if g == 0: sal[0] += sl + (["s_nop 0"] if any("m0" in x for x in sl) else [])
            else: sal[g-1] += sl
        mem[g].append(ins); cost[g] += c
    if valus:
        total = sum(cost[val_lo:val_hi]) + len(valus)
        n = val_hi - val_lo
        acc = 0; k = 0
        for g in range(val_lo, val_hi):
            target = (total * (g - val_lo + 1)) / n
            acc += cost[g]
            while k < len(valus) and (acc + 1 <= target + 1e-9 or g == val_hi - 1):
                val[g].append(valus[k]); k += 1; acc += 1
    return sal, mem, val

def interleave(a_, b_):
    if not b_: return list(a_)
    if not a_: return list(b_)
    out = []; n = len(a_) + len(b_); ia = ib = 0
    for i in range(n):
        if ib < len(b_) and (ia >= len(a_) or (ib + 0.5) * n / len(b_) <= i + 1):
            out.append(b_[ib]); ib += 1
        else:
            out.append(a_[ia]); ia += 1
    return out
```

```python
import re

class Prog:
    def __init__(self):
        self.items = []
    def __call__(self, s):
        for line in s.split("\n"):
            line = line.strip()
            if line:
                self.items.append(line)
    def text(self):
        out = []
        for it in self.items:
            if it.endswith(":") or it.startswith(".") or it.startswith(";"):
                out.append(it)
            else:
                out.append("  " + it)
        return "\n".join(out) + "\n"

def R(f, b, n=1):
    return f"{f}{b}" if n == 1 else f"{f}[{b}:{b+n-1}]"
def v(b, n=1): return R("v", b, n)
def a(b, n=1): return R("a", b, n)
def s(b, n=1): return R("s", b, n)

_reg = re.compile(r"^(-|abs\(|\|)?([vas])(?:(\d+)|\[(\d+):(\d+)\])\)?\|?$")
def regs(op):
    op = op.strip()
    if op in ("vcc",): return {("s", 106), ("s", 107)}
    if op == "vcc_lo": return {("s", 106)}
    if op == "vcc_hi": return {("s", 107)}
    if op == "exec": return {("s", 126), ("s", 127)}
    if op == "m0": return {("s", 124)}
    m = _reg.match(op)
    if not m: return set()
    f = m.group(2)
    if m.group(3) is not None: return {(f, int(m.group(3)))}
    return {(f, i) for i in range(int(m.group(4)), int(m.group(5)) + 1)}

TRANS = ("v_exp_f32", "v_log_f32", "v_rcp_f32", "v_rsq_f32", "v_sqrt_f32", "v_sin_f32", "v_cos_f32")

class I:
    def __init__(self, text):
        self.text = text
        t = text.split(";")[0].strip()
        parts = t.split(None, 1)
        self.op = parts[0]
        rest = parts[1] if len(parts) > 1 else ""
        ops = [x.strip() for x in re.split(r",(?![^\[]*\])", rest)] if rest else []
        self.mods = ""
        if ops:
            l = ops[-1].split(None, 1)
            ops[-1] = l[0]
            self.mods = l[1] if len(l) > 1 else ""
        self.ops = ops
        op = self.op
        self.kind = "other"
        self.w = set(); self.r = set()
        self.ws = 1
        self.dpp = "_dpp" in op or "row_" in self.mods or "quad_perm" in self.mods
        if op.startswith("v_mfma"):
            self.kind = "mfma"
            self.D = regs(ops[0]); self.A = regs(ops[1]); self.B = regs(ops[2]); self.C = regs(ops[3])
            self.w = set(self.D); self.r = self.A | self.B | self.C
            self.passes = 4 if "16x16x32" in op else 8 if "32x32x16" in op else None
            assert self.passes, op
        elif op.startswith("v_"):
            self.kind = "valu"
            if op.startswith("v_permlane") and "swap" in op:
                self.w = regs(ops[0]) | regs(ops[1]); self.r = set(self.w)
            elif op.startswith("v_cmp"):
                self.w = regs(ops[0])
                for o in ops[1:]: self.r |= regs(o)
            elif op.startswith(("v_add_co", "v_sub_co", "v_addc_co", "v_subb_co")):
                self.w = regs(ops[0]) | regs(ops[1])
                for o in ops[2:]: self.r |= regs(o)
            elif op == "v_nop":
                pass
            else:
                self.w = regs(ops[0])
                for o in ops[1:]: self.r |= regs(o)
                if op.startswith(("v_fmac", "v_dot2c", "v_writelane")) or self.dpp or "sdwa" in op:
                    self.r |= regs(ops[0])
                if op.startswith("v_cndmask") and len(ops) == 3:
                    self.r |= regs("vcc")
            self.trans = op.replace("_e32", "").replace("_e64", "") in TRANS
        elif op.startswith("ds_"):
            self.kind = "ds"
            if op.startswith(("ds_read", "ds_bpermute", "ds_swizzle", "ds_permute")):
                self.w = regs(ops[0])
                for o in ops[1:]: self.r |= regs(o)
            else:
                for o in ops: self.r |= regs(o)
        elif op.startswith(("buffer_", "global_")):
            self.kind = "vmem"
            self.lds = " lds" in (" " + self.mods) or "_lds_" in op
            self.store = "store" in op or "atomic" in op
            if op in ("buffer_inv", "buffer_wbl2"):
                pass
            elif self.lds:
                for o in ops: self.r |= regs(o)
                self.r |= regs("m0")
            elif self.store:
                for o in ops: self.r |= regs(o)
                if op.startswith("buffer_"): self.data = regs(ops[0])
                else: self.data = regs(ops[1])
                if "atomic" in op and "sc0" in self.mods:
                    self.w = regs(ops[0])
            else:
                self.w = regs(ops[0])
                for o in ops[1:]: self.r |= regs(o)
        elif op.startswith("s_"):
            self.kind = "salu"
            if op == "s_nop": self.ws = int(ops[0], 0) + 1
            elif op.startswith(("s_load", "s_memtime", "s_memrealtime", "s_buffer_load")):
                self.kind = "smem"; self.w = regs(ops[0])
                for o in ops[1:]: self.r |= regs(o)
            elif op.startswith(("s_cmp", "s_cbranch", "s_branch", "s_waitcnt", "s_barrier", "s_endpgm", "s_setprio", "s_bitcmp", "s_sleep", "s_setpc")):
                for o in ops: self.r |= regs(o)
            else:
                self.w = regs(ops[0])
                for o in ops[1:]: self.r |= regs(o)
                if "saveexec" in op: self.w |= regs("exec")

def linearize(items, start=None, taken=(), loops=2, stop_at=None):
    lab = {}
    for i, it in enumerate(items):
        if it.endswith(":"): lab[it[:-1]] = i
    pc = lab[start] if start else 0
    seen = {}
    out = []
    tk = {}
    while pc < len(items):
        it = items[pc]
        if it.endswith(":") or it.startswith(".") or it.startswith(";"):
            pc += 1; continue
        ins = I(it); ins.pc = pc
        out.append(ins)
        if ins.op == "s_endpgm": break
        if ins.op == "s_branch":
            pc = lab[ins.ops[0]];
            seen[("b", ins.pc)] = seen.get(("b", ins.pc), 0) + 1
            if seen[("b", ins.pc)] > 3: break
            continue
        if ins.op == "s_cbranch_vccnz" or (ins.op == "s_cbranch_scc1" and ("_st" in ins.ops[0] or "_walkdone" in ins.ops[0])):
            pc += 1; continue
        if ins.op.startswith("s_cbranch"):
            tgt = lab[ins.ops[0]]
            if tgt <= pc:
                c = seen.get(pc, 0)
                if c < loops - 1:
                    seen[pc] = c + 1; pc = tgt; continue
                seen[pc] = 0
            elif ins.ops[0] in taken and tk.get(pc, 0) < 1:
                tk[pc] = 1
                pc = tgt; continue
        pc += 1
    return out

def check(trace, name=""):
    errs = []
    n = len(trace)
    def dist(i, j):
        return sum(trace[k].ws for k in range(i + 1, j))
    isv = lambda rs: {x for x in rs if x[0] in "va"}
    iss = lambda rs: {x for x in rs if x[0] == "s"}
    for j, c in enumerate(trace):
        d = 0
        for i in range(j - 1, max(-1, j - 24), -1):
            p = trace[i]
            need = 0; why = ""
            def req(nn, w):
                nonlocal need, why
                if nn > need: need, why = nn, w
            if p.kind == "valu":
                pw = isv(p.w); ps = iss(p.w)
                if c.kind == "mfma" and pw & c.r: req(2, "valu->mfma")
                if c.kind == "valu":
                    if p.trans and not c.trans and pw & c.r: req(1, "trans->valu")
                    if c.op.startswith("v_permlane") and pw & c.r: req(2, "valu->permlane")
                    if c.op.startswith(("v_readlane", "v_readfirstlane")) and pw & c.r: req(1, "valu->readlane")
                    if c.dpp and pw & c.r: req(2, "valu->dpp")
                    if ps & c.r: req(4 if c.op.startswith(("v_readlane", "v_writelane")) else 2, "valu sgpr->valu")
                    if "sdwa" in p.op and pw & (c.r | c.w): req(1, "sdwa->valu")
                if c.kind == "vmem" and ps & c.r: req(5, "valu sgpr->vmem")
                if p.trans and c.kind in ("vmem", "ds", "mfma") and pw & c.r: req(2 if c.kind == "mfma" else 1, "trans->mem")
            if p.kind == "mfma":
                big = 8 if p.passes == 4 else 12
                if c.kind == "valu" and p.D & (c.r | c.w): req(big, "mfma D->valu")
                if c.kind in ("vmem", "ds") and p.D & (c.r | c.w): req(big, "mfma D->mem")
                if c.kind == "mfma":
                    if p.D & (c.A | c.B): req(big, "mfma D->A/B")
                    if p.D & c.C and not (p.D == c.C and p.passes == c.passes): req(6 if p.passes == 4 else 10, "mfma D->C partial")
                    if p.D & c.D and not (p.D == c.C): req(6 if p.passes == 4 else 10, "mfma D->D waw (no chain)")
                if c.kind == "valu" and p.C & c.w: req(3 if p.passes == 4 else 7, "mfma C war")
            if p.kind == "salu" and ("s", 124) in p.w and c.kind == "vmem" and c.lds: req(1, "m0->dma")
            if p.kind == "vmem" and getattr(p, "store", False) and ("x4" in p.op or "x3" in p.op) and hasattr(p, "data"):
                if p.data & c.w: req(2 if c.kind == "valu" else 1, "store data war")
            if need > d:
                errs.append(f"{name}: hazard {why} need {need} have {d}: [{p.pc}] {p.text}  ->  [{c.pc}] {c.text}")
            d += p.ws
            if d >= 20: break
    vm = []; lg = []
    for j, c in enumerate(trace):
        if c.op == "s_waitcnt":
            t = c.text
            m = re.search(r"vmcnt\((\d+)\)", t)
            if m:
                k = int(m.group(1)); assert k <= 63
                vm = vm[len(vm) - k:] if k < len(vm) else vm
                if k == 0: vm = []
            m = re.search(r"lgkmcnt\((\d+)\)", t)
            if m:
                k = int(m.group(1)); assert k <= 15
                if k == 0: lg = []
                else:
                    sm = [x for x in lg if x.kind == "smem"]; dd = [x for x in lg if x.kind != "smem"]
                    lg = sm + (dd[len(dd) - k:] if k < len(dd) else dd)
            continue
        for lst, nm in ((vm, "vmcnt"), (lg, "lgkmcnt")):
            for p in lst:
                if p.w & (c.r | c.w):
                    if p.kind == c.kind and not (p.w & c.r) and p.kind != "smem":
                        continue
                    errs.append(f"{name}: missing {nm} wait: [{p.pc}] {p.text}  ->  [{c.pc}] {c.text}")
        if c.kind == "vmem":
            vm.append(c)
            if len(vm) > 63:
                errs.append(f"{name}: vmcnt overflow at [{c.pc}] {c.text}"); vm = vm[-63:]
        if c.kind in ("ds", "smem"):
            lg.append(c)
    return errs

import subprocess, os, tempfile
def offsets(items):
    txt = '.amdgcn_target "amdgcn-amd-amdhsa--gfx950"\n.text\n.p2align 12\n'
    out = []
    n = 0
    for i, it in enumerate(items):
        if it.endswith(":") or it.startswith(".") or it.startswith(";"):
            out.append(it)
        else:
            out.append(f"ZZ{i}:"); out.append(it)
    d = tempfile.mkdtemp()
    open(d + "/a.s", "w").write(txt + "\n".join(out) + "\n")
    r = subprocess.run(["clang", "-x", "assembler", "-target", "amdgcn-amd-amdhsa", "-mcpu=gfx950", "-c", d + "/a.s", "-o", d + "/a.o"], capture_output=True, text=True)
    assert r.returncode == 0, r.stderr[:3000]
    r = subprocess.run(["llvm-readelf", "-s", "--wide", d + "/a.o"], capture_output=True, text=True)
    off = [None] * len(items)
    for line in r.stdout.split("\n"):
        f = line.split()
        if len(f) >= 8 and f[7].startswith("ZZ"):
            off[int(f[7][2:])] = int(f[1], 16)
    return off

def add_walk(p, tag, swave, end_label=None):
    items = p.items
    if ";@BODY" not in items: return 0
    bi = items.index(";@BODY")
    items[bi:bi+1] = [f"s_branch L_{tag}_body", ".p2align 12", f"L_{tag}_body:"]
    sites = {}
    i = 0
    while i < len(items):
        if items[i].startswith(";@WALK"):
            f = items[i].split()
            k = int(f[1]); waves = [int(c) for c in f[2]]
            sites[k] = waves
            code = ["s_mov_b64 vcc, -1"]
            for w in waves:
                code += [f"s_cmp_eq_u32 s{swave}, {w}", f"s_cbranch_scc1 @{k}@{w}"]
            code += [f"L_{tag}_walkdone{k}:", "s_mov_b64 vcc, 0"]
            items[i:i+1] = code
        i += 1
    k = 0
    zone_of = []
    while True:
        off = offsets([x if "@" not in x or x.startswith(";") else "s_nop 0" for x in items])
        b = items.index(f"L_{tag}_body:")
        base = next(o for o in off[b:] if o is not None)
        endi = items.index(end_label + ":") if end_label else len(items)
        cand = [i for i in range(b + 1, endi) if off[i] is not None and off[i] - base >= k * 4096]
        if not cand: break
        def in_dispatch(i):
            j = i - 1
            while j > b:
                if items[j] == "s_mov_b64 vcc, 0": return False
                if items[j] == "s_mov_b64 vcc, -1": return True
                if i - j > 16: return False
                j -= 1
            return False
        cand = [i for i in cand[:40] if not in_dispatch(i)]
        pos = cand[0]
        for i in cand[:8]:
            if off[i] - base - k * 4096 > 40: break
            j = i - 1
            while off[j] is None: j -= 1
            if items[j].startswith("v_mfma"):
                pos = i; break
        z = 0
        for it in items[b:pos]:
            if it.startswith(";@ZONE"): z = int(it.split()[1])
        zone_of.append(z)
        items[pos:pos] = [f"L_{tag}_st{k}:", f"s_cbranch_vccnz @{k}"]
        k += 1
    n = k
    nxt = {}; first = {}
    for z, waves in sites.items():
        pages = [kk for kk in range(n) if zone_of[kk] == z]
        for wi, w in enumerate(waves):
            mine = pages[wi::len(waves)]
            first[(z, w)] = f"L_{tag}_st{mine[0]}" if mine else f"L_{tag}_walkdone{z}"
            for a_, b_ in zip(mine, mine[1:] + [None]):
                nxt[a_] = f"L_{tag}_st{b_}" if b_ is not None else f"L_{tag}_walkdone{z}"
    for i, it in enumerate(items):
        if it.startswith("s_cbranch_vccnz @"):
            items[i] = "s_cbranch_vccnz " + nxt[int(it.split("@")[1])]
        elif it.startswith("s_cbranch_scc1 @"):
            f = it.split("@")
            items[i] = "s_cbranch_scc1 " + first[(int(f[1]), int(f[2]))]
    return zone_of
```

```python
from common import *

MF = "v_mfma_f32_16x16x32_bf16"
vKa = [4, 5, 6, 7]
vVa = [8, 9, 10, 11, 12, 13, 14, 15]
vDK, vDV, vDW, vH = 16, 17, 18, 19
vL = [20, 21, 22, 23]
vM = [24, 25, 26, 27]
vT = [28, 29, 30, 31]
vNEG = 32
vTMP = 48
vQ = 64
vS = 128
vP = 192
vONE = 224
vLS = 228
aO = 0
aK = 128
aV = 192
sK, sV, sW, sH, sO = 4, 8, 12, 16, 20
sWave, sM0K, sM0V, sOffKV, sCnt, sRetry, sT0 = 24, 25, 26, 27, 28, 29, 30
SLOT = 16384
LDS_K, LDS_V, LDS_X = 0, 65536, 131072
LDS_BYTES = 163840

def lane_consts(p, tid=0, lane=1, tmp=(2, 3, 28, 29, 30, 31), want_k=True):
    t0, t1, t2, t3, t4, t5 = tmp
    p(f"v_and_b32 v{lane}, 63, v{tid}")
    p(f"v_and_b32 v{t0}, 15, v{lane}")
    p(f"v_lshrrev_b32 v{t1}, 4, v{lane}")
    if want_k:
        p(f"v_lshrrev_b32 v{t2}, 2, v{t0}")
        p(f"v_lshlrev_b32 v{t2}, 12, v{t2}")
        p(f"v_and_b32 v{t3}, 3, v{t0}")
        p(f"v_lshl_add_u32 v{t2}, v{t3}, 8, v{t2}")
        p(f"v_xor_b32 v{t3}, v{t1}, v{t0}")
        p(f"v_lshl_add_u32 v{vKa[0]}, v{t3}, 4, v{t2}")
        for s_ in range(1, 4): p(f"v_xor_b32 v{vKa[s_]}, {s_<<6}, v{vKa[0]}")
    p(f"v_lshrrev_b32 v{t2}, 2, v{t0}")
    p(f"v_lshl_add_u32 v{t3}, v{t1}, 4, v{t2}")
    p(f"v_lshlrev_b32 v{t3}, 8, v{t3}")
    p(f"v_and_b32 v{t4}, 1, v{t1}")
    p(f"v_lshl_add_u32 v{t2}, v{t4}, 2, v{t2}")
    p(f"v_lshl_add_u32 v{t3}, v{t2}, 5, v{t3}")
    p(f"v_and_b32 v{t4}, 3, v{t0}")
    p(f"v_lshl_add_u32 v{t3}, v{t4}, 3, v{t3}")
    p(f"v_add_u32 v{vVa[0]}, {LDS_V}, v{t3}")
    for d in range(1, 8): p(f"v_xor_b32 v{vVa[d]}, {d<<5}, v{vVa[0]}")

def kread(buf, unit_in_tile, slot):
    out = []
    for kt in range(2):
        for s_ in range(4):
            off = slot*SLOT + (2*unit_in_tile + kt)*1024
            out.append(f"ds_read_b128 {a(aK + buf*32 + (kt*4+s_)*4, 4)}, v{vKa[s_]} offset:{off}")
    return out

def vread(dst_file, dst_base, unit_in_tile, slot):
    out = []
    for dt in range(8):
        for hh in range(2):
            off = slot*SLOT + (2*unit_in_tile + hh)*1024
            out.append(f"ds_read_b64_tr_b16 {R(dst_file, dst_base + dt*4 + hh*2, 2)}, v{vVa[dt]} offset:{off}")
    return out

def qk_mfmas(sbuf, kbuf, czero=False):
    out = []
    for qt in range(4):
        for kt in range(2):
            d = vS + sbuf*32 + (qt*2+kt)*4
            for s_ in range(4):
                c = v(d, 4) if s_ else ("0" if czero else v(vNEG + qt*4, 4))
                out.append(f"{MF} {v(d,4)}, {a(aK + kbuf*32 + (kt*4+s_)*4, 4)}, {v(vQ + (qt*4+s_)*4, 4)}, {c}")
    return out

def pv_mfmas(pbuf, vbuf, mfmasum):
    out = []
    for dt in range(8):
        for qt in range(4):
            o = aO + (dt*4+qt)*4
            out.append(f"{MF} {a(o,4)}, {a(aV + vbuf*32 + dt*4, 4)}, {v(vP + pbuf*16 + qt*4, 4)}, {a(o,4)}")
    if mfmasum:
        for qt in range(4):
            out.append(f"{MF} {v(vLS+qt*4,4)}, {v(vONE,4)}, {v(vP + pbuf*16 + qt*4, 4)}, {v(vLS+qt*4,4)}")
    return out

def sm_ops(sbuf, pbuf, mfmasum):
    e, ad, c = [], [], []
    for i in range(32):
        r = vS + sbuf*32 + i
        e.append(f"v_exp_f32 v{r}, v{r}")
        if not mfmasum: ad.append(f"v_add_f32 v{vL[i//8]}, v{vL[i//8]}, v{r}")
    for j in range(16):
        r = vS + sbuf*32 + 2*j
        c.append(f"v_cvt_pk_bf16_f32 v{vP + pbuf*16 + j}, v{r}, v{r+1}")
    return e, ad, c

def dma_group(srd_, voff, soff, m0expr):
    return m0expr, [f"buffer_load_dwordx4 v{voff}, {s(srd_,4)}, s{soff} offen offset:{n*1024} lds" for n in range(4)]

def schedule(p, mf, sm=None, ds=(), dma=(), pre=(), post=(), extra_valu=(), ds_hi=None):
    NG = len(mf)
    sal = [[] for _ in range(NG)]; mem = [[] for _ in range(NG)]; val = [[] for _ in range(NG)]
    cost = [0]*NG
    for g, lst in dict(pre).items(): sal[g % NG] += lst
    e, ad, c = sm if sm else ([], [], [])
    epos = []
    if e:
        for i in range(32):
            g = (i * NG) // 32
            if NG < 64: g = (i * NG) // 32
            val[g].append(e[i]); cost[g] += 2; epos.append(g)
    free = [g for g in range(NG) if cost[g] == 0] or list(range(NG))
    hi = ds_hi if ds_hi is not None else NG - 8
    cand = [g for g in free if g < hi]
    items = list(ds)
    nd = len(dma)
    allm = [("ds", x) for x in items]
    for k, d in enumerate(dma):
        allm.insert(min(len(allm), (k * (len(items) + nd)) // max(nd, 1) + 2), ("dma", d))
    for k, (kind, x) in enumerate(allm):
        g = cand[(k * len(cand)) // len(allm)]
        if kind == "ds":
            mem[g].append(x); cost[g] += 1
        else:
            if x[0]: sal[g-1].append(x[0])
            mem[g].append(x[1]); cost[g] += 2
    def place(ins, earliest):
        best = None
        for lim in (2, 3, 4, 99):
            for g in range(earliest, min(NG, earliest + (6 if lim < 99 else NG))):
                if cost[g] + 1 <= lim:
                    best = g; break
            if best is not None: break
        if best is None: best = NG - 1
        val[best].append(ins); cost[best] += 1
    tail = []
    work = []
    for i in range(len(ad)): work.append((epos[i] + 1, 0, ad[i]))
    for j in range(len(c)): work.append((epos[2*j+1] + 1, 1, c[j]))
    work.sort(key=lambda x: (x[0], -x[1]))
    for ear, _, ins in work:
        if ear >= NG: tail.append(ins)
        else: place(ins, ear)
    for k, ins in enumerate(extra_valu): place(ins, (k * NG) // len(extra_valu))
    for g in range(NG):
        p(mf[g])
        for x in sal[g] + mem[g] + val[g]: p(x)
    if tail: p("s_nop 0")
    for x in tail: p(x)
    for x in post: p(x)
    return sum(max(2, cc) for cc in cost)

def gen_attn(p, mfmasum=False, walk=True):
    L = "k_attn_kernel"
    header(p, L)
    p("s_cmp_ge_u32 s2, 256")
    p("s_cbranch_scc1 L_attn_end")
    stamp_begin(p)
    p(f"s_load_dwordx2 s[46:47], s[0:1], {KA_WS}")
    p(f"s_load_dwordx2 s[{sW}:{sW+1}], s[0:1], {KA_WQ}")
    p(f"s_load_dwordx2 s[{sK}:{sK+1}], s[0:1], {KA_K}")
    p(f"s_load_dwordx2 s[{sV}:{sV+1}], s[0:1], {KA_V}")
    p(f"s_load_dwordx2 s[52:53], s[0:1], {KA_WO}")
    p(f"s_load_dwordx2 s[56:57], s[0:1], {KA_W1}")
    p(f"s_load_dwordx2 s[60:61], s[0:1], {KA_W2}")
    p("s_bfe_u32 s40, s2, 0x20001")
    p("s_lshl_b32 s40, s40, 3")
    p("s_bfe_u32 s41, s2, 0x30003")
    p("s_add_u32 s40, s40, s41")
    p("s_and_b32 s41, s2, 1")
    p("s_lshl_b32 s41, s41, 2")
    p("s_lshr_b32 s42, s2, 6")
    p("s_add_u32 s41, s41, s42")
    p("v_lshrrev_b32 v2, 6, v0")
    p("v_and_b32 v1, 63, v0")
    p(f"v_readfirstlane_b32 s{sWave}, v2")
    p("v_lshrrev_b32 v2, 4, v1")
    p("v_and_b32 v3, 15, v1")
    p(f"v_lshlrev_b32 v{vH}, 4, v1")
    p("v_lshlrev_b32 v28, 2, v2")
    p("v_xor_b32 v28, v28, v3")
    p(f"s_lshl_b32 s43, s{sWave}, 12")
    p("v_lshl_add_u32 v29, v2, 8, s43")
    p("v_lshlrev_b32 v30, 5, v29")
    p(f"v_lshl_add_u32 v{vDW}, v28, 4, v30")
    p("s_lshl_b32 s42, s41, 4")
    p(f"s_lshl_b32 s44, s{sWave}, 2")
    p("s_add_u32 s44, s44, s42")
    p("s_waitcnt lgkmcnt(0)")
    p("s_lshl_b32 s42, s44, 14")
    p(f"s_add_u32 s42, s42, {WS_H}")
    srd(p, sH, 46, 65536, "s42")
    srd(p, sO, 46, 4096, WS_MOD)
    p("s_lshl_b32 s42, s40, 8")
    srd(p, sW, sW, 0, "s42")
    p(f"s_sub_u32 s{sW+2}, {512*4096*2}, s42")
    p(f"s_mov_b32 s{sM0K}, s43")
    p(f"s_add_u32 s{sM0V}, s43, {LDS_V}")

    vRing = lambda st: 32 + ((st + 1) & 3) * 16
    vCon = lambda st: 96 + (st & 1) * 16
    vTm = 24
    vACC = 128
    vWa = [8, 9, 10, 11]; vCa = 12
    issued = []
    def w_loads(T):
        out = []
        for n in range(4):
            sal = [f"s_mov_b32 s{sT0+n}, {T*64*8192 + n*(4*8192 - 1024)}", f"s_add_u32 m0, s{sM0V}, {(T & 3)*SLOT}"]
            out.append((sal, f"buffer_load_dwordx4 v{vDW}, {s(sW,4)}, s{sT0+n} offen offset:{n*1024} lds", ("W", T)))
        return out
    def b_loads(st):
        out = []
        for qt in range(4):
            sal = [f"s_mov_b32 s{sT0+4+qt}, {qt*16384 + st*1024}"]
            out.append((sal, f"buffer_load_dwordx4 {v(vRing(st) + qt*4, 4)}, v{vH}, {s(sH,4)}, s{sT0+4+qt} offen", ("B", st)))
        return out
    def kv_group(which, tile):
        srd_, voff, m0b = (sK, vDK, sM0K) if which == "K" else (sV, vDV, sM0V)
        out = []
        for n in range(4):
            sal = [f"s_mov_b32 s{sT0+8}, {tile*SLOT}", f"s_add_u32 m0, s{m0b}, {(tile&3)*SLOT}"]
            out.append((sal, f"buffer_load_dwordx4 v{voff}, {s(srd_,4)}, s{sT0+8} offen offset:{n*1024} lds", (which, tile)))
        return out
    def emit_loads(lst):
        last = None
        for sal, ins, tag in lst:
            sl = [x for x in sal if not ("m0" in x and x == last)]
            for x in sl:
                p(x)
                if "m0" in x: last = x
            if sl and "m0" in sl[-1]: p("s_nop 0")
            p(ins); issued.append(tag)
    def vm_after(tag):
        idx = max(i for i, t in enumerate(issued) if t == tag)
        return len(issued) - 1 - idx
    p(f"s_lshl_b32 s{sT0}, s{sWave}, 10")
    p(f"s_add_u32 m0, s{sT0}, {LDS_X}")
    p("s_nop 0")
    p(f"buffer_load_dwordx4 v{vH}, {s(sO,4)}, s{sT0} offen lds"); issued.append(("C", 0))
    emit_loads(b_loads(0) + w_loads(0) + b_loads(1) + w_loads(1))
    p("s_lshl_b32 s42, s40, 19")
    srd(p, sK, sK, 524288, "s42")
    srd(p, sV, sV, 524288, "s42")
    p("s_lshl_b32 s42, s44, 17")
    p("s_lshl_b32 s45, s40, 12")
    p("s_add_u32 s42, s42, s45")
    p(f"s_add_u32 s42, s42, {WS_O}")
    srd(p, sO, 46, 3*131072 + 4096, "s42")
    srd(p, 52, 52, 4096*512*2)
    srd(p, 56, 56, 512*1376*2)
    srd(p, 60, 60, 512*1376*2)
    p(f"s_mov_b32 s{sRetry}, 0")
    p(f"s_lshl_b32 s42, s{sWave}, 2")
    p("v_or_b32 v28, s42, v2")
    p("v_xor_b32 v28, v28, v3")
    p(f"v_lshl_add_u32 v{vDK}, v28, 4, v29")
    p(f"s_and_b32 s42, s{sWave}, 1")
    p("s_lshl_b32 s42, s42, 2")
    p("v_or_b32 v28, s42, v2")
    p("v_lshlrev_b32 v28, 1, v28")
    p("v_xor_b32 v28, v28, v3")
    p(f"v_lshl_add_u32 v{vDV}, v28, 4, v29")
    p("v_lshrrev_b32 v28, 2, v3")
    p("v_lshl_add_u32 v28, v2, 4, v28")
    p("v_lshlrev_b32 v28, 8, v28")
    p("v_lshl_add_u32 v28, v3, 4, v28")
    p(f"v_add_u32 v{vWa[0]}, {LDS_V}, v28")
    for s_ in range(1, 4): p(f"v_xor_b32 v{vWa[s_]}, {s_<<6}, v{vWa[0]}")
    p(f"v_lshlrev_b32 v{vCa}, 6, v2")
    p(f"v_add_u32 v{vCa}, {LDS_X}, v{vCa}")
    p("v_lshrrev_b32 v28, 2, v3")
    p("v_lshlrev_b32 v28, 12, v28")
    p("v_and_b32 v29, 3, v3")
    p("v_lshl_add_u32 v28, v29, 8, v28")
    p("v_xor_b32 v29, v2, v3")
    p(f"v_lshl_add_u32 v{vKa[0]}, v29, 4, v28")
    for s_ in range(1, 4): p(f"v_xor_b32 v{vKa[s_]}, {s_<<6}, v{vKa[0]}")
    if walk: p(";@WALK 0 0123")
    for i in range(128): p(f"v_accvgpr_write_b32 a{i}, 0")
    if walk: p(";@BODY")
    def wread(st):
        T, u = st >> 1, st & 1
        out = []
        for dt in range(8):
            for hh in range(2):
                off = (T & 3)*SLOT + (2*u + hh)*1024 + (dt & 1)*8
                out.append(f"ds_read_b64_tr_b16 {a(aV + (st & 1)*32 + dt*4 + hh*2, 2)}, v{vWa[dt >> 1]} offset:{off}")
        return out
    def cread(st):
        T, u = st >> 1, st & 1
        o = T*256 + u*32
        c = vCon(st)
        return [f"ds_read_b128 {v(c,4)}, v{vCa} offset:{2048+o}", f"ds_read_b128 {v(c+4,4)}, v{vCa} offset:{2048+o+16}",
                f"ds_read_b128 {v(c+8,4)}, v{vCa} offset:{o}", f"ds_read_b128 {v(c+12,4)}, v{vCa} offset:{o+16}"]
    def modulate(st):
        out = []
        c = vCon(st)
        for qt in range(4):
            r = vRing(st) + qt*4
            for hf in range(2):
                for i in range(2*hf, 2*hf+2):
                    for e in range(2):
                        j = 2*i + e
                        out.append(f"v_fma_mix_f32 v{vTm+j}, v{r+i}, v{c+j}, v{c+8+j} op_sel:[{e},0,0] op_sel_hi:[1,0,0]")
                for i in range(2*hf, 2*hf+2):
                    out.append(f"v_cvt_pk_bf16_f32 v{r+i}, v{vTm+2*i}, v{vTm+2*i+1}")
        return out
    p(f"s_waitcnt vmcnt({vm_after(('W',0))})")
    p("s_barrier")
    stamp(p, 1)
    for x in cread(0) + cread(1) + wread(0)[:8]: p(x)
    emit_loads(b_loads(2))
    p("s_waitcnt lgkmcnt(12)")
    for x in wread(0)[8:]: p(x)
    m0_ = modulate(0)
    for x in m0_[:24]: p(x)
    emit_loads(w_loads(2))
    for x in m0_[24:]: p(x)
    kvq = {7: kv_group("K",0), 8: kv_group("K",1), 9: kv_group("V",0), 10: kv_group("K",2), 11: kv_group("V",1), 12: kv_group("K",3), 13: kv_group("V",2)}
    def qconv(s_):
        out = []
        for qt in range(4):
            d_ = vQ + (qt*4+s_)*4
            for t in range(2):
                src = vACC + ((2*s_+t)*4+qt)*4
                out.append(f"v_cvt_pk_bf16_f32 v{d_+2*t}, v{src}, v{src+1}")
                out.append(f"v_cvt_pk_bf16_f32 v{d_+2*t+1}, v{src+2}, v{src+3}")
        return out
    for st in range(16):
        T, u = st >> 1, st & 1
        need = []
        if st + 1 < 16: need.append(vm_after(("B", st+1)))
        if u == 1: need.append(vm_after(("W", T+1)) if T < 7 else vm_after(("K", 0)))
        p(f"s_waitcnt vmcnt({min(need)}) lgkmcnt(0)")
        if u == 1: p("s_barrier")
        mf = []
        for dt in range(8):
            for qt in range(4):
                d_ = vACC + (dt*4+qt)*4
                mf.append(f"{MF} {v(d_,4)}, {a(aV + (st & 1)*32 + dt*4, 4)}, {v(vRing(st) + qt*4, 4)}, {'0' if st == 0 else v(d_,4)}")
        ds = (wread(st+1) if st < 15 else kread(0, 0, 0) + kread(1, 1, 0))
        if st + 2 < 16: ds = interleave(ds, cread(st+2))
        ld = []
        if st + 3 < 16: ld += b_loads(st+3)
        if T + 3 < 8: ld += w_loads(T+3)[2*u:2*u+2]
        ld += kvq.get(st, [])
        mems = interleave([([], x, 1) for x in ds], [(sl, ins, 2) for sl, ins, tag in ld])
        for sl, ins, tag in ld: issued.append(tag)
        if st < 15:
            sal, mem, val = pack_gaps(32, mems, modulate(st+1), mem_hi=28)
        else:
            sal, mem, val = pack_gaps(32, mems, [], mem_hi=16)
            for s_ in range(3):
                cv = qconv(s_)
                for k, x in enumerate(cv): val[min(31, 8*s_ + 12 + k // 2)].append(x)
        emit_gaps(p, mf, sal, mem, val)
    stamp(p, 2)
    p("v_and_b32 v3, 15, v1")
    p("v_lshrrev_b32 v2, 4, v1")
    p("v_lshrrev_b32 v28, 2, v3")
    p("v_lshl_add_u32 v29, v2, 4, v28")
    p("v_lshlrev_b32 v29, 8, v29")
    p("v_and_b32 v30, 1, v2")
    p("v_lshl_add_u32 v28, v30, 2, v28")
    p("v_lshl_add_u32 v29, v28, 5, v29")
    p("v_and_b32 v30, 3, v3")
    p("v_lshl_add_u32 v29, v30, 3, v29")
    p(f"v_add_u32 v{vVa[0]}, {LDS_V}, v29")
    for x in qconv(3): p(x)
    for d in range(1, 8): p(f"v_xor_b32 v{vVa[d]}, {d<<5}, v{vVa[0]}")
    for q in range(4): p(f"v_mov_b32 v{vM[q]}, 0xff7fffff")
    if mfmasum:
        for r in range(4): p(f"v_mov_b32 v{vONE+r}, 0x3f803f80")
    p(f"s_lshl_b32 s{sT0}, s2, 2")
    p(f"s_add_u32 s{sT0}, s{sT0}, s{sWave}")
    p(f"s_lshl_b32 s{sT0}, s{sT0}, 12")
    p(f"v_lshlrev_b32 v{vTMP}, 6, v1")
    p(f"v_lshlrev_b32 v{vTMP+1}, 7, v1")
    p(f"buffer_load_dword v{vTMP+2}, v{vTMP}, s[52:55], s{sT0} offen")
    p(f"buffer_load_dword v{vTMP+3}, v{vTMP}, s[56:59], s{sT0} offen")
    p(f"buffer_load_dword v{vTMP+4}, v{vTMP}, s[60:63], s{sT0} offen")

    p("L_attn_restart:")
    p("s_waitcnt lgkmcnt(0)")
    zl = [f"v_mov_b32 v{r}, 0" for r in (range(vLS, vLS+16) if mfmasum else vL)]
    mf = qk_mfmas(0, 0, czero=True)
    val = [[] for _ in range(32)]
    for k, x in enumerate(zl): val[k // 2].append(x)
    for qt in range(3):
        for k in range(4):
            b = vS + qt*8 + 2*k
            val[qt*8 + 16 + k if qt*8 + 16 + k < 32 else 31].append(f"v_max3_f32 v{vM[qt]}, v{vM[qt]}, v{b}, v{b+1}")
    v31 = val[31]; val[31] = []
    emit_gaps(p, mf, [[]]*32, [[]]*32, val)
    for x in v31: p(x)
    p("s_nop 3")
    for k in range(4):
        b = vS + 24 + 2*k
        p(f"v_max3_f32 v{vM[3]}, v{vM[3]}, v{b}, v{b+1}")
    xlane_reduce(p, "v_max_f32", vM, vT)
    for qt in range(4):
        for r in range(4): p(f"v_sub_f32 v{vNEG+qt*4+r}, 0, v{vM[qt]}")
    for i in range(8): p(f"v_sub_f32 v{vS+i}, v{vS+i}, v{vM[i//8]}")
    subs = [f"v_sub_f32 v{vS+i}, v{vS+i}, v{vM[i//8]}" for i in range(8, 32)]
    p(f"s_mov_b32 s{sOffKV}, {4*SLOT}")
    p(f"s_mov_b32 s{sCnt}, 0")

    def period(u):
        do_qk = (u + 2 <= 63); do_sm = (0 <= u + 1 <= 63); do_pv = (u >= 0)
        mf = []
        if do_qk: mf += qk_mfmas((u+2) & 1, (u+2) & 1)
        if do_pv: mf += pv_mfmas(u & 1, u & 1, mfmasum)
        sm = sm_ops((u+1) & 1, (u+1) & 1, mfmasum) if do_sm else None
        ds = []
        kr = kread((u+3) & 1, (u+3) & 1, ((u+3) >> 1) & 3) if u + 3 <= 63 else []
        vr = vread("a", aV + ((u+1) & 1)*32, (u+1) & 1, ((u+1) >> 1) & 3) if u + 1 <= 63 else []
        while kr or vr:
            if kr: ds.append(kr.pop(0))
            if vr: ds.append(vr.pop(0))
        t = (u + 1) >> 1
        dma = []; pre = {}
        if u < 62:
            if (u & 1) == 1:
                p(f"s_waitcnt vmcnt(16)")
                p("s_barrier")
                for n in range(4):
                    dma.append((f"s_add_u32 m0, s{sM0K}, {(t & 3)*SLOT}" if n == 0 else None,
                                f"buffer_load_dwordx4 v{vDK}, {s(sK,4)}, s{sOffKV} offen offset:{n*1024} lds"))
            else:
                pre[0] = [f"s_sub_u32 s{sT0}, s{sOffKV}, {SLOT}"]
                pre[2] = [f"s_add_u32 s{sOffKV}, s{sOffKV}, {SLOT}"]
                for n in range(4):
                    dma.append((f"s_add_u32 m0, s{sM0V}, {((t+3) & 3)*SLOT}" if n == 0 else None,
                                f"buffer_load_dwordx4 v{vDV}, {s(sV,4)}, s{sT0} offen offset:{n*1024} lds"))
        NG = len(mf)
        if ds: pre.setdefault(NG-1, []).append("s_waitcnt lgkmcnt(0)")
        return mf, sm, ds, dma, pre

    mf, sm, ds, dma, pre = period(-1)
    e, ad, c = sm
    e = [ (subs[i] + "\n" if i < len(subs) else "") + e[i] for i in range(32)]
    schedule(p, mf, (e, ad, c), ds, dma, pre, ds_hi=len(mf)-4)
    stamp(p, 3)
    p("s_branch L_attn_p0")
    p(".p2align 6")
    p("L_attn_loop:")
    for u in range(1, 9):
        if u == 8: p("L_attn_p0:")
        mf, sm, ds, dma, pre = period(u)
        NG = len(mf)
        if u == 5:
            pre.setdefault(NG-3, []).append(f"s_add_u32 s{sCnt}, s{sCnt}, 1")
            pre.setdefault(NG-2, []).append(f"s_cmp_eq_u32 s{sCnt}, 8")
        c_ = schedule(p, mf, sm, ds, dma, pre)
        if u == 1: print("attn period slots:", c_, "of", 2*len(mf))
        if u == 5: p("s_cbranch_scc1 L_attn_tail")
    p("s_branch L_attn_loop")
    p("L_attn_tail:")
    stamp(p, 4)
    p(f"s_lshr_b32 s{sT0}, s2, 3")
    p(f"s_lshl_b32 s{sT0}, s{sT0}, 2")
    p(f"s_add_u32 s{sT0}, s{sT0}, s{sWave}")
    p(f"s_lshl_b32 s{sT0}, s{sT0}, 13")
    p(f"s_bfe_u32 s{sT0+1}, s2, 0x20001")
    p(f"s_lshl_b32 s{sT0+1}, s{sT0+1}, 20")
    p(f"s_add_u32 s{sT0}, s{sT0}, s{sT0+1}")
    p(f"buffer_load_dword v{vTMP+5}, v{vTMP+1}, s[52:55], s{sT0} offen")
    for u in (62, 63):
        mf, sm, ds, dma, pre = period(u)
        if u == 63: p("s_nop 1")
        schedule(p, mf, sm, ds, dma, pre, ds_hi=len(mf)-4)
    stamp(p, 5)
    if mfmasum:
        p("s_nop 7")
        for qt in range(4): p(f"v_mov_b32 v{vL[qt]}, v{vLS+qt*4}")
    else:
        xlane_reduce(p, "v_add_f32", vL, vT)
    vR = vNEG
    for qt in range(4): p(f"v_rcp_f32 v{vR+qt}, v{vL[qt]}")
    p(f"v_add_f32 v{vT[0]}, v{vL[0]}, v{vL[1]}")
    p(f"v_add_f32 v{vT[1]}, v{vL[2]}, v{vL[3]}")
    p(f"v_add_f32 v{vT[0]}, v{vT[0]}, v{vT[1]}")
    p(f"v_mov_b32 v{vT[1]}, {hexf(2.0**40)}")
    p(f"v_cmp_nlt_f32 s[{sT0+2}:{sT0+3}], v{vT[0]}, v{vT[1]}")
    p(f"s_cmp_lg_u64 s[{sT0+2}:{sT0+3}], 0")
    p(f"s_cselect_b32 s{sT0+1}, 1, 0")
    p(f"s_lshl_b32 s{sT0+2}, s{sWave}, 2")
    p(f"s_add_u32 s{sT0+2}, s{sT0+2}, {LDS_X}")
    p(f"v_mov_b32 v{vT[0]}, s{sT0+2}")
    p(f"v_mov_b32 v{vT[1]}, s{sT0+1}")
    p(f"v_mov_b32 v{vT[2]}, {LDS_X}")
    p(f"ds_write_b32 v{vT[0]}, v{vT[1]}")
    k = 0
    for qt in range(4):
        p(f"s_mov_b32 s{sT0+2}, {qt*131072}")
        for s_ in range(4):
            b = vS + (k & 3)*8; o = vP + (k & 3)*4; k += 1
            for t in range(2):
                for r in range(4): p(f"v_accvgpr_read_b32 v{b+4*t+r}, a{aO + ((2*s_+t)*4+qt)*4 + r}")
            for r in range(8): p(f"v_mul_f32 v{b+r}, v{b+r}, v{vR+qt}")
            for r in range(4): p(f"v_cvt_pk_bf16_f32 v{o+r}, v{b+2*r}, v{b+2*r+1}")
            p(f"buffer_store_dwordx4 {v(o,4)}, v{vH}, {s(sO,4)}, s{sT0+2} offen offset:{s_*1024}")
    stamp(p, 6)
    p(f"s_cmp_lg_u32 s{sRetry}, 0")
    p("s_cbranch_scc1 L_attn_end")
    p("s_waitcnt lgkmcnt(0)")
    p("s_barrier")
    p(f"ds_read_b128 {v(vNEG+4,4)}, v{vT[2]}")
    p("s_waitcnt lgkmcnt(0)")
    p(f"v_or_b32 v{vNEG+4}, v{vNEG+4}, v{vNEG+5}")
    p(f"v_or3_b32 v{vNEG+4}, v{vNEG+4}, v{vNEG+6}, v{vNEG+7}")
    p("s_nop 0")
    p(f"v_readfirstlane_b32 s{sT0+1}, v{vNEG+4}")
    p("s_nop 3")
    p(f"s_cmp_eq_u32 s{sT0+1}, 0")
    p("s_cbranch_scc0 L_attn_fallback")
    stamp_end(p, 1)
    p("L_attn_end:")
    p("s_endpgm")
    p("L_attn_fallback:")
    p(f"s_mov_b32 s{sRetry}, 1")
    p("s_waitcnt vmcnt(0)")
    p(f"v_lshrrev_b32 v{vT[0]}, 4, v{vH}")
    p(f"v_and_b32 v{vT[1]}, 15, v{vT[0]}")
    p(f"v_lshrrev_b32 v{vT[0]}, 4, v{vT[0]}")
    p(f"v_lshlrev_b32 v{vT[1]}, 8, v{vT[1]}")
    p(f"v_lshl_add_u32 v{vT[0]}, v{vT[0]}, 4, v{vT[1]}")
    p(f"s_mov_b32 s{sT0}, 0")
    for i in range(128): p(f"v_accvgpr_write_b32 a{i}, 0")
    p("L_attn_maxloop:")
    p(f"s_add_u32 s{sT0+1}, s{sT0}, 4096")
    for kt in range(2):
        for s_ in range(4):
            p(f"buffer_load_dwordx4 {a(aK + (kt*4+s_)*4, 4)}, v{vT[0]}, {s(sK,4)}, s{sT0+kt} offen offset:{s_*64}")
    p("s_waitcnt vmcnt(0)")
    for x in qk_mfmas(0, 0, czero=True): p(x)
    p("s_nop 7")
    for k in range(4):
        for qt in range(4):
            b = vS + qt*8 + 2*k
            p(f"v_max3_f32 v{vM[qt]}, v{vM[qt]}, v{b}, v{b+1}")
    p(f"s_add_u32 s{sT0}, s{sT0}, 8192")
    p(f"s_cmp_lt_u32 s{sT0}, 524288")
    p("s_cbranch_scc1 L_attn_maxloop")
    p("s_barrier")
    for w_, t in (("K",0),("K",1),("V",0),("K",2),("V",1),("K",3),("V",2)):
        emit_loads(kv_group(w_, t))
    p("s_waitcnt vmcnt(24)")
    p("s_barrier")
    for x in kread(0, 0, 0) + kread(1, 1, 0): p(x)
    p("s_branch L_attn_restart")
    if walk: print("attn pages:", add_walk(p, "attn", sWave, end_label="L_attn_end"))
    return L, descriptor(L, 512, 64, 256), f"grid=(256,1,1) block=(256,1,1) lds={LDS_X + 4096}"
```

```python
from common import *

def bf16_round(p, dst, src):
    p(f"v_cvt_pk_bf16_f32 v{dst}, v{src}, v{src}")
    p(f"v_and_b32 v{dst}, 0xffff0000, v{dst}")

def ln_stats(p, xr, n, t0, ldsaddr_w, ldsaddr_r, ldsoff, out_mean, out_rden, reduce=None):
    from k_pre import bf16_round
    acc = [t0, t0+1, t0+2, t0+3]
    for k in range(4): p(f"v_add_f32 v{acc[k]}, v{xr+k}, v{xr+4+k}")
    for i in range(8, n): p(f"v_add_f32 v{acc[i%4]}, v{acc[i%4]}, v{xr+i}")
    p(f"v_add_f32 v{t0}, v{t0}, v{t0+1}")
    p(f"v_add_f32 v{t0+2}, v{t0+2}, v{t0+3}")
    p(f"v_add_f32 v{t0}, v{t0}, v{t0+2}")
    (reduce(p, t0, t0+1) if reduce else xlane_reduce(p, "v_add_f32", [t0], [t0+1]))
    p(f"ds_write_b32 v{ldsaddr_w}, v{t0} offset:{ldsoff}")
    p("s_waitcnt lgkmcnt(0)")
    p("s_barrier")
    p(f"ds_read_b128 v[{t0+4}:{t0+7}], v{ldsaddr_r} offset:{ldsoff}")
    p("s_waitcnt lgkmcnt(0)")
    p(f"v_add_f32 v{t0+4}, v{t0+4}, v{t0+5}")
    p(f"v_add_f32 v{t0+6}, v{t0+6}, v{t0+7}")
    p(f"v_add_f32 v{t0+4}, v{t0+4}, v{t0+6}")
    p(f"v_mul_f32 v{out_mean}, {hexf(1.0/512)}, v{t0+4}")
    for k in range(4): p(f"v_mov_b32 v{acc[k]}, 0")
    for i in range(n):
        tt = t0 + 4 + (i % 4)
        p(f"v_sub_f32 v{tt}, v{xr+i}, v{out_mean}")
        p(f"v_fmac_f32 v{acc[i%4]}, v{tt}, v{tt}")
    p(f"v_add_f32 v{t0}, v{t0}, v{t0+1}")
    p(f"v_add_f32 v{t0+2}, v{t0+2}, v{t0+3}")
    p(f"v_add_f32 v{t0}, v{t0}, v{t0+2}")
    (reduce(p, t0, t0+1) if reduce else xlane_reduce(p, "v_add_f32", [t0], [t0+1]))
    p(f"ds_write_b32 v{ldsaddr_w}, v{t0} offset:{ldsoff+256}")
    p("s_waitcnt lgkmcnt(0)")
    p("s_barrier")
    p(f"ds_read_b128 v[{t0+4}:{t0+7}], v{ldsaddr_r} offset:{ldsoff+256}")
    p("s_waitcnt lgkmcnt(0)")
    p(f"v_add_f32 v{t0+4}, v{t0+4}, v{t0+5}")
    p(f"v_add_f32 v{t0+6}, v{t0+6}, v{t0+7}")
    p(f"v_add_f32 v{t0+4}, v{t0+4}, v{t0+6}")
    p(f"v_mul_f32 v{t0+4}, {hexf(1.0/512)}, v{t0+4}")
    bf16_round(p, t0+4, t0+4)
    p(f"v_add_f32 v{t0+4}, {hexf(1e-5)}, v{t0+4}")
    bf16_round(p, t0+4, t0+4)
    p(f"v_sqrt_f32 v{t0+4}, v{t0+4}")
    p("s_nop 0")
    bf16_round(p, t0+4, t0+4)
    p(f"v_rcp_f32 v{out_rden}, v{t0+4}")
    bf16_round(p, out_mean, out_mean)


def gen_pre(p):
    L = "k_pre_kernel"
    header(p, L)
    p("s_cmp_ge_u32 s2, 256")
    p("s_cbranch_scc1 L_pre_end")
    stamp_begin(p)
    p(f"s_load_dwordx4 s[4:7], s[0:1], {KA_C}")
    p(f"s_load_dwordx2 s[8:9], s[0:1], {KA_WS}")
    p(f"s_load_dwordx8 s[36:43], s[0:1], {KA_X}")
    p("s_and_b32 s30, s2, 7")
    p("s_lshr_b32 s31, s2, 3")
    p("s_cmp_lt_u32 s31, 16")
    p("s_cbranch_scc1 L_pre_ln")
    p("s_cmp_ge_u32 s31, 28")
    p("s_cbranch_scc1 L_pre_pf")
    p("s_mul_i32 s29, s30, 12")
    p("s_add_u32 s29, s29, s31")
    p("s_sub_u32 s29, s29, 16")
    p("v_lshrrev_b32 v1, 2, v0")
    p("v_and_b32 v2, 3, v0")
    p("v_mul_u32_u24 v3, 6144, v1")
    p("v_lshl_add_u32 v3, v2, 4, v3")
    p("v_lshlrev_b32 v4, 1, v1")
    p("s_lshl_b32 s24, s29, 6")
    p("s_waitcnt lgkmcnt(0)")
    srd(p, 16, 6, 512*3072*2)
    srd(p, 12, 4, 1024)
    for i in range(8):
        p(f"buffer_load_dwordx4 v[{16+4*i}:{19+4*i}], v3, s[16:19], s24 offen")
        if i < 7: p(f"s_add_u32 s24, s24, {64*6144}")
    for i in range(8):
        p(f"buffer_load_ushort v{8+i}, v4, s[12:15], 0 offen offset:{128*i}")
    srd(p, 20, 8, 3072*4, WS_MOD)
    for i in range(8): p(f"v_mov_b32 v{48+i}, 0")
    p("v_lshrrev_b32 v5, 4, v0")
    p("v_lshlrev_b32 v5, 7, v5")
    p("v_lshl_add_u32 v5, v2, 5, v5")
    p("v_and_b32 v6, 15, v0")
    p("s_waitcnt vmcnt(0)")
    for i in range(8): p(f"v_lshlrev_b32 v{8+i}, 16, v{8+i}")
    for i in range(8): p(f"v_mul_f32 v{56+i}, {hexf(-LOG2E)}, v{8+i}")
    for i in range(8): p(f"v_exp_f32 v{56+i}, v{56+i}")
    for i in range(8): p(f"v_add_f32 v{56+i}, 1.0, v{56+i}")
    for i in range(8): p(f"v_rcp_f32 v{56+i}, v{56+i}")
    for i in range(8): p(f"v_mul_f32 v{8+i}, v{8+i}, v{56+i}")
    for i in range(8): bf16_round(p, 8+i, 8+i)
    for i in range(8):
        for d in range(4):
            r = 16 + 4*i + d
            p(f"v_lshlrev_b32 v56, 16, v{r}")
            p(f"v_and_b32 v57, 0xffff0000, v{r}")
            p(f"v_fmac_f32 v{48+2*d}, v{8+i}, v56")
            p(f"v_fmac_f32 v{49+2*d}, v{8+i}, v57")
    p("v_cmp_gt_u32 s[26:27], 4, v6")
    p("s_nop 0")
    for rot in (4, 8):
        for i in range(8): p(f"v_add_f32_dpp v{48+i}, v{48+i}, v{48+i} row_ror:{rot} row_mask:0xf bank_mask:0xf")
    p("s_and_saveexec_b64 s[26:27], s[26:27]")
    p("ds_write_b128 v5, v[48:51]")
    p("ds_write_b128 v5, v[52:55] offset:16")
    p("s_mov_b64 exec, s[26:27]")
    p("v_cmp_gt_u32 s[26:27], 32, v0")
    p("v_lshlrev_b32 v5, 2, v0")
    cs = LOG2E / (128 ** 0.5)
    p("s_lshr_b32 s25, s29, 4")
    p("s_cmp_eq_u32 s25, 1")
    p("s_cselect_b32 s28, 1.0, 0")
    p("s_cmp_eq_u32 s25, 4")
    p("s_cselect_b32 s28, 1.0, s28")
    p("s_cmp_lt_u32 s25, 2")
    p(f"s_cselect_b32 s25, {hexf(cs)}, 1.0")
    p("s_lshl_b32 s24, s29, 7")
    p("s_waitcnt lgkmcnt(0)")
    p("s_barrier")
    p("s_and_saveexec_b64 s[26:27], s[26:27]")
    p("s_cbranch_execz L_pre_done")
    for i in range(16): p(f"ds_read_b32 v{16+i}, v5 offset:{128*i}")
    p("s_waitcnt lgkmcnt(0)")
    for st in (8, 4, 2, 1):
        for i in range(st): p(f"v_add_f32 v{16+i}, v{16+i}, v{16+i+st}")
    bf16_round(p, 16, 16)
    p("v_add_f32 v16, s28, v16")
    bf16_round(p, 16, 16)
    p("v_mul_f32 v16, s25, v16")
    p("buffer_store_dword v16, v5, s[20:23], s24 offen")
    p("s_branch L_pre_done")
    p("L_pre_pf:")
    p("v_lshrrev_b32 v1, 6, v0")
    p("s_sub_u32 s29, s31, 28")
    p("s_lshl_b32 s29, s29, 2")
    p("v_add_u32 v1, s29, v1")
    p("s_lshr_b32 s29, s30, 1")
    p("s_lshl_b32 s29, s29, 3")
    p("v_lshrrev_b32 v2, 1, v1")
    p("v_add_u32 v2, s29, v2")
    p("v_lshlrev_b32 v2, 19, v2")
    p("v_and_b32 v3, 63, v0")
    p("v_lshl_add_u32 v2, v3, 7, v2")
    p("v_and_b32 v1, 1, v1")
    p("v_lshl_add_u32 v3, v1, 14, v2")
    p("v_lshl_add_u32 v4, v1, 13, v2")
    p("s_waitcnt lgkmcnt(0)")
    srd(p, 12, 38, 32*524288)
    srd(p, 16, 40, 32*524288)
    p("s_mov_b32 s24, 8192")
    p("buffer_load_dword v8, v3, s[12:15], 0 offen")
    p("buffer_load_dword v9, v3, s[12:15], s24 offen")
    p("buffer_load_dword v10, v4, s[16:19], 0 offen")
    p("s_waitcnt vmcnt(0)")
    p("s_branch L_pre_done")
    p("L_pre_ln:")
    p("s_and_b32 s28, s30, 1")
    p("s_lshl_b32 s28, s28, 6")
    p("s_lshr_b32 s29, s30, 1")
    p("s_lshl_b32 s27, s29, 4")
    p("s_add_u32 s28, s28, s27")
    p("s_add_u32 s28, s28, s31")
    p("v_and_b32 v1, 15, v0")
    p("v_bfe_u32 v2, v0, 4, 2")
    p("v_lshrrev_b32 v3, 6, v0")
    p("v_lshlrev_b32 v4, 10, v1")
    p("v_lshl_add_u32 v4, v3, 8, v4")
    p("v_lshl_add_u32 v4, v2, 5, v4")
    p("s_lshl_b32 s24, s28, 14")
    p("s_waitcnt lgkmcnt(0)")
    srd(p, 12, 36, 2048*512*2)
    for f in range(4):
        p(f"buffer_load_dwordx4 v[{16+4*f}:{19+4*f}], v4, s[12:15], s24 offen offset:{(f>>1)*128 + (f&1)*16}")
    srd(p, 20, 8, 2048*512*2, WS_H)
    srd(p, 16, 42, 512*4096*2)
    p("v_and_b32 v6, 63, v0")
    p("s_lshl_b32 s27, s31, 2")
    p("v_add_u32 v12, s27, v3")
    p("v_lshlrev_b32 v12, 3, v12")
    p("v_add_u32 v12, v12, v2")
    p("v_lshlrev_b32 v12, 13, v12")
    p("v_lshl_add_u32 v12, v1, 7, v12")
    p("s_lshl_b32 s26, s29, 11")
    p("s_add_u32 s27, s26, 32768")
    p("v_lshlrev_b32 v6, 4, v6")
    p("v_lshl_add_u32 v6, v3, 12, v6")
    p("v_lshlrev_b32 v8, 4, v1")
    p("v_lshl_add_u32 v7, v3, 2, v8")
    p("s_waitcnt vmcnt(0)")
    p("buffer_load_dword v13, v12, s[16:19], s26 offen")
    p("buffer_load_dword v14, v12, s[16:19], s27 offen")
    for r in range(16):
        p(f"v_lshlrev_b32 v{32+2*r}, 16, v{16+r}")
        p(f"v_and_b32 v{33+2*r}, 0xffff0000, v{16+r}")
    ln_stats(p, 32, 32, 16, 7, 8, 0, 10, 11)
    for i in range(32):
        p(f"v_sub_f32 v{32+i}, v{32+i}, v10")
        p(f"v_mul_f32 v{32+i}, v{32+i}, v11")
    for r in range(16):
        p(f"v_cvt_pk_f16_f32 v{16+r}, v{32+2*r}, v{33+2*r}")
    for f in range(4):
        p(f"buffer_store_dwordx4 v[{16+4*f}:{19+4*f}], v6, s[20:23], s24 offen offset:{1024*f}")
    p("L_pre_done:")
    stamp_end(p, 0)
    p("L_pre_end:")
    p("s_endpgm")
    return L, descriptor(L, 64, 48), "grid=(256,1,1) block=(256,1,1) lds=2048"
```

```python
from common import *
from k_pre import bf16_round, ln_stats
MF = "v_mfma_f32_16x16x32_bf16"
SLOT = 16384

def vtile_addr(p, lane, regs8, base, tmp):
    t0, t1, t2, t3, t4 = tmp
    p(f"v_and_b32 v{t0}, 15, v{lane}")
    p(f"v_lshrrev_b32 v{t1}, 4, v{lane}")
    p(f"v_lshrrev_b32 v{t2}, 2, v{t0}")
    p(f"v_lshl_add_u32 v{t3}, v{t1}, 4, v{t2}")
    p(f"v_lshlrev_b32 v{t3}, 8, v{t3}")
    p(f"v_and_b32 v{t4}, 1, v{t1}")
    p(f"v_lshl_add_u32 v{t2}, v{t4}, 2, v{t2}")
    p(f"v_lshl_add_u32 v{t3}, v{t2}, 5, v{t3}")
    p(f"v_and_b32 v{t4}, 3, v{t0}")
    p(f"v_lshl_add_u32 v{regs8[0]}, v{t4}, 3, v{t3}")
    if base: p(f"v_add_u32 v{regs8[0]}, {base}, v{regs8[0]}")
    for d in range(1, 8): p(f"v_xor_b32 v{regs8[d]}, {d<<5}, v{regs8[0]}")

def gemm128(p, NT, NN, rowstride, sW, sB, sWbase, bstride, W, late=(), walk=True, setup_rest=None):
    A0 = list(range(4, 12))
    vDW, vB = 20, 21
    p("v_lshrrev_b32 v2, 4, v1")
    p("v_and_b32 v3, 15, v1")
    p("s_and_b32 s44, s24, 1")
    p("s_lshl_b32 s44, s44, 2")
    p("v_or_b32 v22, s44, v2")
    p("v_lshlrev_b32 v22, 1, v22")
    p("v_xor_b32 v22, v22, v3")
    p("s_lshl_b32 s44, s24, 2")
    p("v_add_u32 v23, s44, v2")
    p(f"v_mul_u32_u24 v23, {rowstride}, v23")
    p(f"v_lshl_add_u32 v{vDW}, v22, 4, v23")
    if NN < 8:
        p(f"v_cmp_le_u32 s[46:47], {2*NN}, v22")
        p("v_mov_b32 v23, 0x40000000")
        p("s_nop 0")
        p(f"v_cndmask_b32 v{vDW}, v{vDW}, v23, s[46:47]")
    p(f"v_lshlrev_b32 v{vB}, 4, v1")
    p("s_lshl_b32 s45, s24, 12")
    issued = []
    def wl(T):
        return [([f"s_add_u32 s{48+n}, s{sWbase}, {(64*T + 16*n)*rowstride - n*1024}", f"s_add_u32 m0, s45, {(T & 3)*SLOT}"],
                 f"buffer_load_dwordx4 v{vDW}, {s(sW,4)}, s{48+n} offen offset:{n*1024} lds", T) for n in range(4)]
    def bl(T):
        return [([f"s_mov_b32 s{52+mt+2*u}, {mt*bstride + T*2048}"],
                 f"buffer_load_dwordx4 {a(((T*2+u)*2+mt)*4, 4)}, v{vB}, {s(sB,4)}, s{52+mt+2*u} offen offset:{u*1024}", T) for u in range(2) for mt in range(2)]
    def loads(T):
        w_, b_ = wl(T), bl(T)
        return [w_[0], w_[1], b_[0], b_[1], w_[2], w_[3], b_[2], b_[3]]
    def emit(lst):
        last = None
        for sal, ins, tag in lst:
            sl = [x for x in sal if not ("m0" in x and x == last)]
            for x in sl:
                p(x)
                if "m0" in x: last = x
            if sl and "m0" in sl[-1]: p("s_nop 0")
            p(ins); issued.append(tag)
    def vm_after(tag):
        idx = max(i for i, t in enumerate(issued) if t == tag)
        return len(issued) - 1 - idx
    p("s_waitcnt lgkmcnt(0)")
    setup_rest[0](p)
    emit(loads(0) + loads(1))
    stamp(p, 1)
    setup_rest[1](p)
    vtile_addr(p, 1, A0, 0, (22, 23, 24, 25, 26))
    if walk:
        p(";@WALK 0 0123"); p(";@BODY")
    vA = [32, 64]; vACC = 128
    def wread(buf, T, u):
        return [f"ds_read_b64_tr_b16 {v(vA[buf] + nt*4 + hh*2, 2)}, v{A0[nt]} offset:{(T & 3)*SLOT + (2*u + hh)*1024}" for nt in range(NN) for hh in range(2)]
    p(f"s_waitcnt vmcnt({vm_after(0)})")
    p("s_barrier")
    stamp(p, 2)
    for x in wread(0, 0, 0): p(x)
    for T in range(2, W): emit(loads(T))
    late = list(late)
    NG = 2*NN
    for st in range(2*NT):
        T, u = st >> 1, st & 1
        buf = st & 1
        if st == NT: stamp(p, 3)
        if u == 1 and T + 1 < NT:
            p(f"s_waitcnt vmcnt({vm_after(T+1)}) lgkmcnt(0)")
            p("s_barrier")
        else:
            p("s_waitcnt lgkmcnt(0)")
        ld = loads(T + W)[4*u:4*u+4] if T + W < NT else []
        if T + W == NT and u == 0: ld = [(sl, ins, "late") for sl, ins in late]
        mf = []
        for nt in range(NN):
            for mt in range(2):
                d_ = vACC + (nt*2+mt)*4
                mf.append(f"{MF} {v(d_,4)}, {v(vA[buf] + nt*4, 4)}, {a((st*2+mt)*4, 4)}, {'0' if st == 0 else v(d_,4)}")
        ds = wread(buf ^ 1, (st+1) >> 1, (st+1) & 1) if st + 1 < 2*NT else []
        sal = [[] for _ in range(NG)]; mem = [[] for _ in range(NG)]
        for k, x in enumerate(ds): mem[(k * (NG - 3)) // len(ds)].append(x)
        for k, (sl, ins, tag) in enumerate(ld):
            g = 1 + (k * (NG - 1)) // len(ld) + (NG - 1) // len(ld) - 1
            sal[g-1] += sl
            mem[g].append(ins); issued.append(tag)
        emit_gaps(p, mf, sal, mem, [[]]*NG)
    stamp(p, 4)
    p("s_nop 7")
    return vACC, vB

def gen_oproj(p, W=3):
    L = "k_oproj_kernel"
    header(p, L)
    p("s_cmp_ge_u32 s2, 256")
    p("s_cbranch_scc1 L_oproj_end")
    stamp_begin(p)
    p(f"s_load_dwordx2 s[4:5], s[0:1], {KA_WO}")
    p(f"s_load_dwordx2 s[34:35], s[0:1], {KA_WS}")
    p(f"s_load_dwordx2 s[16:17], s[0:1], {KA_W1}")
    p("v_lshrrev_b32 v2, 6, v0")
    p("v_and_b32 v1, 63, v0")
    p("v_readfirstlane_b32 s24, v2")
    p("s_bfe_u32 s36, s2, 0x20001")
    p("s_and_b32 s37, s2, 1")
    p("s_lshl_b32 s37, s37, 3")
    p("s_lshr_b32 s38, s2, 5")
    p("s_add_u32 s37, s37, s38")
    p("s_bfe_u32 s38, s2, 0x20003")
    p("s_lshl_b32 s39, s37, 3")
    p("s_lshl_b32 s40, s24, 1")
    p("s_add_u32 s39, s39, s40")
    p("s_lshl_b32 s42, s36, 20")
    p("s_lshl_b32 s41, s38, 8")
    p("s_add_u32 s42, s42, s41")
    p("s_lshl_b32 s40, s39, 17")
    p("s_lshl_b32 s41, s36, 15")
    p("s_add_u32 s40, s40, s41")
    p(f"s_add_u32 s40, s40, {WS_O}")
    def s0(p):
        srd(p, 4, 4, 4096*512*2)
        srd(p, 8, 34, 131072 + 32768, "s40")
    def s1(p):
        p("s_lshl_b32 s40, s36, 21")
        p("s_lshl_b32 s41, s39, 14")
        p("s_add_u32 s40, s40, s41")
        p("s_lshl_b32 s41, s38, 12")
        p("s_add_u32 s40, s40, s41")
        p(f"s_add_u32 s40, s40, {WS_PART}")
        srd(p, 12, 34, 16384 + 4096, "s40")
        srd(p, 16, 16, 512*1376*2)
        p("s_lshr_b32 s40, s2, 3")
        p("s_lshl_b32 s40, s40, 2")
        p("s_add_u32 s40, s40, s24")
        p("s_lshl_b32 s40, s40, 14")
        p("s_add_u32 s41, s40, 8192")
        p("v_lshlrev_b32 v27, 7, v1")
    late = [([], "buffer_load_dword v28, v27, s[16:19], s40 offen"), ([], "buffer_load_dword v29, v27, s[16:19], s41 offen")]
    vACC, vB = gemm128(p, 16, 8, 1024, 4, 8, 42, 131072, W, late=late, setup_rest=(s0, s1))
    k = 0
    for mt in range(2):
        p(f"s_mov_b32 s44, {mt*16384}")
        for s_ in range(4):
            o = 32 + k*4; k += 1
            for t in range(2):
                src = vACC + ((2*s_+t)*2+mt)*4
                p(f"v_cvt_pk_bf16_f32 v{o+2*t}, v{src}, v{src+1}")
                p(f"v_cvt_pk_bf16_f32 v{o+2*t+1}, v{src+2}, v{src+3}")
            p(f"buffer_store_dwordx4 {v(o,4)}, v{vB}, s[12:15], s44 offen offset:{s_*1024}")
    stamp(p, 5)
    stamp_end(p, 2)
    p("L_oproj_end:")
    p("s_endpgm")
    print("oproj pages:", add_walk(p, "oproj", 24, end_label="L_oproj_end"))
    return L, descriptor(L, 512, 64, 256), "grid=(256,1,1) block=(256,1,1) lds=65536"

def row_reduce8(p, r, t):
    p("s_nop 1")
    p(f"v_add_f32_dpp v{r}, v{r}, v{r} row_ror:8 row_mask:0xf bank_mask:0xf")
    xlane_reduce(p, "v_add_f32", [r], [t])

def gen_ln2(p):
    L = "k_ln2_kernel"
    header(p, L)
    p("s_cmp_ge_u32 s2, 256")
    p("s_cbranch_scc1 L_ln2_end")
    stamp_begin(p)
    p(f"s_load_dwordx2 s[8:9], s[0:1], {KA_WS}")
    p(f"s_load_dwordx2 s[12:13], s[0:1], {KA_X}")
    p(f"s_load_dwordx2 s[36:37], s[0:1], {KA_W2}")
    p("s_and_b32 s24, s2, 7")
    p("s_lshl_b32 s24, s24, 4")
    p("s_lshr_b32 s25, s2, 4")
    p("s_add_u32 s24, s24, s25")
    p("s_bfe_u32 s25, s2, 0x10003")
    p("s_lshl_b32 s24, s24, 14")
    p("s_lshl_b32 s26, s25, 7")
    p("s_add_u32 s26, s26, s24")
    p("s_lshl_b32 s27, s25, 13")
    p("s_add_u32 s27, s27, s24")
    p("v_and_b32 v1, 7, v0")
    p("v_bfe_u32 v2, v0, 3, 2")
    p("v_lshrrev_b32 v3, 6, v0")
    p("v_bfe_u32 v9, v0, 5, 1")
    p("v_lshlrev_b32 v6, 12, v3")
    p("v_lshl_add_u32 v6, v9, 10, v6")
    p("v_lshl_add_u32 v6, v2, 8, v6")
    p("v_lshl_add_u32 v6, v1, 4, v6")
    p("v_lshlrev_b32 v4, 10, v1")
    p("v_lshl_add_u32 v4, v3, 8, v4")
    p("v_lshl_add_u32 v4, v9, 6, v4")
    p("v_lshl_add_u32 v4, v2, 3, v4")
    p("v_lshlrev_b32 v5, 9, v3")
    p("v_lshl_add_u32 v5, v9, 7, v5")
    p("v_lshl_add_u32 v5, v2, 4, v5")
    p("s_waitcnt lgkmcnt(0)")
    srd(p, 32, 8, 4*2048*512*2, WS_PART)
    PP = 16
    for kq in range(4):
        if kq: p(f"s_add_u32 s38, s26, {kq << 21}")
        for i in range(2):
            p(f"buffer_load_dwordx4 {v(PP + kq*8 + i*4, 4)}, v6, s[32:35], s{38 if kq else 26} offen offset:{i*2048}")
    srd(p, 12, 12, 2048*512*2)
    srd(p, 16, 8, 3072*4, WS_MOD)
    X0 = 48
    for i in range(2):
        for jh in range(2):
            p(f"buffer_load_dwordx2 {v(X0 + i*4 + jh*2, 2)}, v4, s[12:15], s27 offen offset:{i*128 + jh*32}")
    G0, SB, CB = 56, 72, 88
    for base, ch in ((G0, 2), (SB, 3), (CB, 4)):
        p(f"s_mov_b32 s38, {ch*2048}")
        for i in range(2):
            for jh in range(2):
                p(f"buffer_load_dwordx4 {v(base + i*8 + jh*4, 4)}, v5, s[16:19], s38 offen offset:{i*256 + jh*64}")
    srd(p, 36, 36, 1376*512*2)
    p("s_lshr_b32 s40, s2, 3")
    p("s_lshl_b32 s40, s40, 16")
    p("s_add_u32 s41, s40, 8192")
    p("v_and_b32 v12, 63, v0")
    p("v_lshlrev_b32 v12, 7, v12")
    p("v_lshl_add_u32 v12, v3, 14, v12")
    p("buffer_load_dword v13, v12, s[36:39], s40 offen")
    p("buffer_load_dword v14, v12, s[36:39], s41 offen")
    srd(p, 20, 8, 2048*512*2, WS_H2)
    srd(p, 28, 8, 2048*512*2, WS_X1)
    p("v_lshlrev_b32 v8, 4, v1")
    p("v_lshl_add_u32 v7, v3, 2, v8")
    F = 104
    T = 120
    p("s_waitcnt vmcnt(22)")
    for j in range(8):
        p(f"v_lshlrev_b32 v{F+2*j}, 16, v{PP+j}")
        p(f"v_and_b32 v{F+2*j+1}, 0xffff0000, v{PP+j}")
        p(f"v_lshlrev_b32 v{T}, 16, v{PP+8+j}")
        p(f"v_and_b32 v{T+1}, 0xffff0000, v{PP+8+j}")
        p(f"v_add_f32 v{F+2*j}, v{F+2*j}, v{T}")
        p(f"v_add_f32 v{F+2*j+1}, v{F+2*j+1}, v{T+1}")
    p("s_waitcnt vmcnt(18)")
    for j in range(8):
        for kq in (2, 3):
            p(f"v_lshlrev_b32 v{T}, 16, v{PP+8*kq+j}")
            p(f"v_and_b32 v{T+1}, 0xffff0000, v{PP+8*kq+j}")
            p(f"v_add_f32 v{F+2*j}, v{F+2*j}, v{T}")
            p(f"v_add_f32 v{F+2*j+1}, v{F+2*j+1}, v{T+1}")
    p("s_waitcnt vmcnt(10)")
    for j in range(8):
        r = F + 2*j
        p(f"v_cvt_pk_bf16_f32 v{T}, v{r}, v{r+1}")
        p(f"v_lshlrev_b32 v{r}, 16, v{T}")
        p(f"v_and_b32 v{r+1}, 0xffff0000, v{T}")
        p(f"v_mul_f32 v{r}, v{r}, v{G0+2*j}")
        p(f"v_mul_f32 v{r+1}, v{r+1}, v{G0+2*j+1}")
        p(f"v_cvt_pk_bf16_f32 v{T}, v{r}, v{r+1}")
        p(f"v_lshlrev_b32 v{r}, 16, v{T}")
        p(f"v_and_b32 v{r+1}, 0xffff0000, v{T}")
        p(f"v_lshlrev_b32 v{T+1}, 16, v{X0+j}")
        p(f"v_and_b32 v{T+2}, 0xffff0000, v{X0+j}")
        p(f"v_add_f32 v{r}, v{r}, v{T+1}")
        p(f"v_add_f32 v{r+1}, v{r+1}, v{T+2}")
        p(f"v_cvt_pk_bf16_f32 v{X0+j}, v{r}, v{r+1}")
        p(f"v_lshlrev_b32 v{r}, 16, v{X0+j}")
        p(f"v_and_b32 v{r+1}, 0xffff0000, v{X0+j}")
    for i in range(2):
        p(f"buffer_store_dwordx4 {v(X0+4*i, 4)}, v6, s[28:31], s26 offen offset:{2048*i}")
    ln_stats(p, F, 16, 16, 7, 8, 0, 10, 11, reduce=row_reduce8)
    p("s_waitcnt vmcnt(4)")
    for i in range(16):
        p(f"v_sub_f32 v{F+i}, v{F+i}, v10")
        p(f"v_mul_f32 v{F+i}, v{F+i}, v11")
        p(f"v_fma_f32 v{F+i}, v{F+i}, v{CB+i}, v{SB+i}")
    for j in range(8): p(f"v_cvt_pk_bf16_f32 v{24+j}, v{F+2*j}, v{F+2*j+1}")
    for i in range(2):
        p(f"buffer_store_dwordx4 {v(24+4*i, 4)}, v6, s[20:23], s26 offen offset:{2048*i}")
    stamp_end(p, 3)
    p("L_ln2_end:")
    p("s_endpgm")
    return L, descriptor(L, 128, 48), "grid=(256,1,1) block=(256,1,1) lds=512"

def gen_ffn1(p, W=3):
    L = "k_ffn1_kernel"
    header(p, L)
    p("s_cmp_ge_u32 s2, 240")
    p("s_cbranch_scc1 L_ffn1_end")
    stamp_begin(p)
    p(f"s_load_dwordx2 s[4:5], s[0:1], {KA_W1}")
    p(f"s_load_dwordx2 s[34:35], s[0:1], {KA_WS}")
    p("v_lshrrev_b32 v2, 6, v0")
    p("v_and_b32 v1, 63, v0")
    p("v_readfirstlane_b32 s24, v2")
    p("s_and_b32 s37, s2, 7")
    p("s_lshl_b32 s37, s37, 1")
    p("s_lshr_b32 s38, s2, 3")
    p("s_cmp_ge_u32 s38, 15")
    p("s_cselect_b32 s36, 15, 0")
    p("s_addc_u32 s37, s37, 0")
    p("s_sub_u32 s38, s38, s36")
    p("s_lshl_b32 s39, s37, 3")
    p("s_lshl_b32 s40, s24, 1")
    p("s_add_u32 s39, s39, s40")
    p("s_mul_i32 s42, s38, 192")
    p("s_lshl_b32 s40, s39, 14")
    p(f"s_add_u32 s40, s40, {WS_H2}")
    def s0(p):
        srd(p, 4, 4, 512*1376*2)
        srd(p, 8, 34, 32768, "s40")
    def s1(p):
        p(f"s_mul_i32 s40, s39, {43*1024}")
        p("s_mul_i32 s41, s38, 3072")
        p("s_add_u32 s40, s40, s41")
        p(f"s_add_u32 s40, s40, {WS_U}")
        srd(p, 12, 34, 43*1024 + 3072, "s40")
    vACC, vB = gemm128(p, 8, 6, 2752, 4, 8, 42, 16384, W, setup_rest=(s0, s1))
    k = 0
    for s_ in range(3):
        if s_ == 1:
            p("s_cmp_eq_u32 s38, 14")
            p("s_cbranch_scc1 L_ffn1_done")
        for mt in range(2):
            src = [vACC + ((2*s_+t)*2+mt)*4 + r for t in range(2) for r in range(4)]
            t_ = 32 + (k & 1)*8; o = 48 + (k & 3)*4; k += 1
            for i in range(8): p(f"v_mul_f32 v{t_+i}, {hexf(-LOG2E)}, v{src[i]}")
            for i in range(8): p(f"v_exp_f32 v{t_+i}, v{t_+i}")
            for i in range(8): p(f"v_add_f32 v{t_+i}, 1.0, v{t_+i}")
            for i in range(8): p(f"v_rcp_f32 v{t_+i}, v{t_+i}")
            for i in range(8): p(f"v_mul_f32 v{t_+i}, v{t_+i}, v{src[i]}")
            for i in range(4): p(f"v_cvt_pk_bf16_f32 v{o+i}, v{t_+2*i}, v{t_+2*i+1}")
            p(f"s_mov_b32 s44, {mt*43*1024}")
            p(f"buffer_store_dwordx4 {v(o,4)}, v{vB}, s[12:15], s44 offen offset:{s_*1024}")
    p("L_ffn1_done:")
    stamp(p, 5)
    stamp_end(p, 4)
    p("L_ffn1_end:")
    p("s_endpgm")
    print("ffn1 pages:", add_walk(p, "ffn1", 24, end_label="L_ffn1_end"))
    return L, descriptor(L, 256+128, 64, 256), "grid=(240,1,1) block=(256,1,1) lds=65536"

def gen_ffn2(p, WIN=3):
    L = "k_ffn2_kernel"
    header(p, L)
    p("s_cmp_ge_u32 s2, 256")
    p("s_cbranch_scc1 L_ffn2_end")
    stamp_begin(p)
    p(f"s_load_dwordx2 s[32:33], s[0:1], {KA_W2}")
    p(f"s_load_dwordx2 s[34:35], s[0:1], {KA_WS}")
    p(f"s_load_dwordx2 s[36:37], s[0:1], {KA_OUT}")
    p("v_lshrrev_b32 v2, 6, v0")
    p("v_and_b32 v1, 63, v0")
    p("v_readfirstlane_b32 s24, v2")
    p("s_and_b32 s38, s2, 7")
    p("s_lshl_b32 s38, s38, 2")
    p("s_lshr_b32 s39, s2, 6")
    p("s_add_u32 s38, s38, s39")
    p("s_bfe_u32 s39, s2, 0x30003")
    A = [4, 5, 6, 7]; vD = [8, 9, 10, 11]; vB = 12
    p("v_and_b32 v2, 15, v1")
    p("v_lshrrev_b32 v3, 2, v1")
    p("v_bfe_u32 v13, v3, 1, 2")
    p("v_lshlrev_b32 v14, 7, v3")
    p("v_lshl_add_u32 v14, v13, 5, v14")
    p("v_and_b32 v13, 3, v2")
    p("v_lshl_add_u32 v14, v13, 3, v14")
    p(f"s_mul_i32 s45, s24, 40960")
    p(f"v_add_u32 v{A[0]}, s45, v14")
    for d in range(1, 4): p(f"v_xor_b32 v{A[d]}, {d<<5}, v{A[0]}")
    p("v_lshrrev_b32 v13, 4, v1")
    p("v_lshlrev_b32 v13, 1, v13")
    p("v_and_b32 v14, 7, v1")
    p("v_xor_b32 v13, v13, v14")
    p("v_lshrrev_b32 v14, 3, v1")
    p("v_lshlrev_b32 v14, 10, v14")
    p(f"v_lshl_add_u32 v{vD[0]}, v13, 4, v14")
    for n in range(1, 4): p(f"v_add_u32 v{vD[n]}, {n*(8192-1024)}, v{vD[0]}")
    p(f"v_lshlrev_b32 v{vB}, 4, v1")
    p("s_waitcnt lgkmcnt(0)")
    srd(p, 4, 32, 1376*512*2)
    p(f"s_mul_i32 s40, s38, {4*43*1024}")
    p(f"s_add_u32 s40, s40, {WS_U}")
    srd(p, 8, 34, 4*43*1024, "s40")
    srd(p, 12, 36, 2048*512*2)
    srd(p, 16, 34, 3072*4, WS_MOD)
    srd(p, 20, 34, 2048*512*2, WS_X1)
    p("s_lshl_b32 s42, s24, 15")
    p("s_lshl_b32 s41, s39, 7")
    p("s_add_u32 s42, s42, s41")
    p("s_lshl_b32 s43, s24, 10")
    NS = 11
    issued = []
    def loads(i):
        out = []
        for n in range(4):
            sal = [f"s_add_u32 s48, s42, {i*4*32*1024}", f"s_add_u32 m0, s45, {(i % 10)*4096}"] if n == 0 else []
            out.append((sal, f"buffer_load_dwordx4 v{vD[n]}, s[4:7], s48 offen offset:{n*1024} lds"))
        for mt in range(4):
            sal = [f"s_add_u32 s{50+mt}, s43, {i*4096 + mt*43*1024}"]
            if i == NS - 1:
                sal += ["s_cmp_eq_u32 s24, 3", f"s_cselect_b32 s{50+mt}, 0x40000000, s{50+mt}"]
            out.append((sal, f"buffer_load_dwordx4 {a((i*4+mt)*4, 4)}, v{vB}, s[8:11], s{50+mt} offen"))
        return out
    def emit(lst, tag):
        for sal, ins in lst:
            for x in sal: p(x)
            if sal and "m0" in sal[-1]: p("s_nop 0")
            p(ins); issued.append(tag)
    def vm_after(tag):
        idx = max(i for i, t in enumerate(issued) if t == tag)
        return len(issued) - 1 - idx
    for i in range(2): emit(loads(i), i)
    stamp(p, 1)
    p(";@WALK 0 0123"); p(";@BODY")
    vA = [16, 32]; vACC = 64
    def wread(buf, i):
        return [f"ds_read_b64_tr_b16 {v(vA[buf] + nt*4 + hh*2, 2)}, v{A[nt]} offset:{(i % 10)*4096 + hh*2048}" for nt in range(4) for hh in range(2)]
    p(f"s_waitcnt vmcnt({vm_after(0)})")
    stamp(p, 2)
    for x in wread(0, 0): p(x)
    for i in range(2, WIN): emit(loads(i), i)
    for i in range(NS):
        buf = i & 1
        p("s_waitcnt lgkmcnt(0)")
        ld = loads(i + WIN) if i + WIN < NS else []
        if i + WIN == NS:
            ld = []
            sal0 = ["s_lshl_b32 s46, s38, 2", "s_add_u32 s46, s46, s24", "s_lshl_b32 s47, s46, 14", "s_lshl_b32 s41, s39, 11", "s_add_u32 s41, s41, s47"]
            ld.append((sal0, f"buffer_load_dwordx4 v[48:51], v{vB}, s[20:23], s41 offen"))
            ld.append(([], f"buffer_load_dwordx4 v[52:55], v{vB}, s[20:23], s41 offen offset:1024"))
            sal1 = ["s_lshl_b32 s40, s39, 8", f"s_add_u32 s40, s40, {5*2048}"]
            p("v_and_b32 v13, 48, v1")
            for nt in range(4):
                ld.append((sal1 if nt == 0 else [], f"buffer_load_dwordx4 {v(128+nt*4,4)}, v13, s[16:19], s40 offen offset:{nt*64}"))
        if i + 1 < NS: p(f"s_waitcnt vmcnt({vm_after(i+1)})")
        mf = []
        for nt in range(4):
            for mt in range(4):
                d_ = vACC + (mt*4+nt)*4
                mf.append(f"{MF} {v(d_,4)}, {v(vA[buf] + nt*4, 4)}, {a((i*4+mt)*4, 4)}, {'0' if i == 0 else v(d_,4)}")
        ds = wread(buf ^ 1, i + 1) if i + 1 < NS else []
        fill = [[] for _ in range(16)]; sal = [[] for _ in range(16)]
        for k, x in enumerate(ds): fill[(k*12)//8 & ~1 if False else (0,2,4,4,6,8,8,10)[k]].append(x)
        for k, (sl, ins) in enumerate(ld):
            g = 1 + 2*k
            sal[g-1] += sl
            fill[g].insert(0, ins); issued.append(i + WIN)
        for g in range(16):
            p(mf[g])
            for x in sal[g] + fill[g]: p(x)
    p("s_nop 7")
    stamp(p, 4)
    p(f"v_add_u32 v14, s45, v{vB}")
    for t in range(16): p(f"ds_write_b128 v14, {v(vACC + t*4, 4)} offset:{t*1024}")
    p("s_lshl_b32 s44, s24, 12")
    p(f"v_add_u32 v14, s44, v{vB}")
    p("v_add_u32 v15, 81920, v14")
    p("s_waitcnt lgkmcnt(0)")
    p("s_barrier")
    for src in range(4):
        for nt in range(4):
            p(f"ds_read_b128 {v(vACC + (src*4+nt)*4, 4)}, v{14 + (src>>1)} offset:{(src&1)*40960 + nt*1024}")
    p("s_waitcnt lgkmcnt(0)")
    for i in range(16):
        p(f"v_add_f32 v{vACC+i}, v{vACC+i}, v{vACC+16+i}")
        p(f"v_add_f32 v{vACC+32+i}, v{vACC+32+i}, v{vACC+48+i}")
    for i in range(16): p(f"v_add_f32 v{vACC+i}, v{vACC+i}, v{vACC+32+i}")
    p("s_waitcnt vmcnt(0)")
    T = 16
    for j in range(8):
        r = vACC + 2*j
        p(f"v_cvt_pk_bf16_f32 v{T}, v{r}, v{r+1}")
        p(f"v_lshlrev_b32 v{r}, 16, v{T}")
        p(f"v_and_b32 v{r+1}, 0xffff0000, v{T}")
        p(f"v_mul_f32 v{r}, v{r}, v{128+2*j}")
        p(f"v_mul_f32 v{r+1}, v{r+1}, v{128+2*j+1}")
        p(f"v_cvt_pk_bf16_f32 v{T}, v{r}, v{r+1}")
        p(f"v_lshlrev_b32 v{r}, 16, v{T}")
        p(f"v_and_b32 v{r+1}, 0xffff0000, v{T}")
        p(f"v_lshlrev_b32 v{T+1}, 16, v{48+j}")
        p(f"v_and_b32 v{T+2}, 0xffff0000, v{48+j}")
        p(f"v_add_f32 v{r}, v{r}, v{T+1}")
        p(f"v_add_f32 v{r+1}, v{r+1}, v{T+2}")
        p(f"v_cvt_pk_bf16_f32 v{24+j}, v{r}, v{r+1}")
    p("v_and_b32 v2, 15, v1")
    p("v_lshlrev_b32 v2, 10, v2")
    p("v_add_u32 v2, v2, v13")
    for sw in ("v_permlane32_swap_b32", "v_permlane16_swap_b32"):
        for s_ in range(2):
            p(f"{sw} v{24+4*s_}, v{26+4*s_}")
            p(f"{sw} v{25+4*s_}, v{27+4*s_}")
    p("s_lshl_b32 s41, s39, 7")
    p("s_add_u32 s47, s47, s41")
    for s_ in range(2):
        p(f"buffer_store_dwordx4 {v(24+4*s_,4)}, v2, s[12:15], s47 offen offset:{s_*64}")
    stamp(p, 5)
    stamp_end(p, 5)
    p("L_ffn2_end:")
    p("s_endpgm")
    print("ffn2 pages:", add_walk(p, "ffn2", 24, end_label="L_ffn2_end"))
    return L, descriptor(L, 256+176, 64, 256), "grid=(256,1,1) block=(256,1,1) lds=163840"
```

```python
import sys
from common import *
import k_pre, k_attn, k_tail

def build(opts={}):
    import common
    common.STAMPS = int(opts.get("stamps", 0))
    gens = [k_pre.gen_pre, lambda p: k_attn.gen_attn(p, mfmasum=opts.get("mfmasum", False)),
            k_tail.gen_oproj, k_tail.gen_ln2, k_tail.gen_ffn1, k_tail.gen_ffn2]
    launches, descs, bodies, errs = [], [], [], []
    for g in gens:
        p = Prog()
        L, d, geo = g(p)
        launches.append(f"; @launch kernel={L} {geo}")
        descs.append(d); bodies.append(p.text())
        errs += check(linearize(p.items, start=L), L)
        if L == "k_attn_kernel":
            errs += check(linearize(p.items, start=L, taken=("L_attn_tail",)), L + "/tail")
            errs += check(linearize(p.items, start=L, taken=("L_attn_tail", "L_attn_fallback",)), L + "/fb")
        if L == "k_pre_kernel":
            errs += check(linearize(p.items, start=L, taken=("L_pre_ln",)), L + "/ln")
            errs += check(linearize(p.items, start=L, taken=("L_pre_pf",)), L + "/pf")
    ref = open(f"cdna_kernels/{NAME}.s.ref").read().split("\n")
    head = [l for l in ref if l.startswith("; Kernarg") or l.startswith(";   offset")]
    out = "\n".join(head + launches) + "\n"
    out += '.amdgcn_target "amdgcn-amd-amdhsa--gfx950"\n.text\n' + "".join(bodies)
    out += '.section .rodata,"a"\n' + "".join(descs)
    return out, errs

if __name__ == "__main__":
    opts = {}
    outp = f"cdna_kernels/{NAME}.s"
    for a_ in sys.argv[1:]:
        if a_.startswith("-o"): outp = a_[2:]
        else:
            k, _, val = a_.partition("=")
            opts[k] = int(val) if val else True
    out, errs = build(opts)
    seen = set()
    for e in errs:
        if e not in seen:
            if len(seen) < 12: print(e)
            seen.add(e)
    open(outp, "w").write(out)
    print("wrote", outp, len(out), "bytes;", len(seen), "checker errors")
```

```python
from dsl import *
NAME = "adaLN_cond__gqa_block_cached__dense_activation_silu__prompt"
KA_X, KA_K, KA_V, KA_WQ, KA_WO, KA_BX, KA_W1, KA_W2, KA_C, KA_WMOD, KA_OUT, KA_DBG, KA_WS = [8*i for i in range(13)]
WS_MOD  = 0x0
WS_H    = 0x100000
WS_O    = 0x400000
WS_PART = WS_O + (16 << 20)
WS_X1   = WS_PART + (8 << 20)
WS_H2   = WS_X1 + (2 << 20)
WS_U    = WS_H2 + (2 << 20)
WS_SCR_BYTES = (28 << 20) + 2048*1376*2
LOG2E = 1.4426950408889634
import struct
def f2u(x): return struct.unpack("<I", struct.pack("<f", x))[0]
def hexf(x): return "0x%08x" % f2u(x)

def header(p, label):
    p(".p2align 8")
    p(f".globl {label}")
    p(f".type {label},@function")
    p(f"{label}:")

def descriptor(label, vgpr, sgpr=96, accum=None):
    if STAMPS: sgpr = 102
    accum = accum if accum is not None else min(256, (vgpr + 3) // 4 * 4)
    return f""".p2align 6
.amdhsa_kernel {label}
  .amdhsa_next_free_vgpr {vgpr}
  .amdhsa_next_free_sgpr {sgpr}
  .amdhsa_accum_offset {accum}
  .amdhsa_group_segment_fixed_size 0
  .amdhsa_kernarg_size 104
  .amdhsa_user_sgpr_count 2
  .amdhsa_user_sgpr_kernarg_segment_ptr 1
  .amdhsa_system_sgpr_workgroup_id_x 1
.end_amdhsa_kernel
"""

def srd(p, d, base, nbytes, add_lo=None):
    if add_lo is None and d == base:
        pass
    elif add_lo is None:
        p(f"s_mov_b32 s{d}, s{base}")
        p(f"s_mov_b32 s{d+1}, s{base+1}")
    else:
        p(f"s_add_u32 s{d}, s{base}, {add_lo}")
        p(f"s_addc_u32 s{d+1}, s{base+1}, 0")
    p(f"s_mov_b32 s{d+2}, {nbytes}")
    p(f"s_mov_b32 s{d+3}, 0x20000")

def xlane_reduce(p, op, regs_, tmp):
    for sw in ("v_permlane32_swap_b32", "v_permlane16_swap_b32"):
        for r, t in zip(regs_, tmp): p(f"v_mov_b32 v{t}, v{r}")
        if len(regs_) < 3: p(f"s_nop {2 - len(regs_)}")
        k = 0
        for r, t in zip(regs_, tmp):
            if len(regs_) >= 3 or k == 0 or True:
                pass
            p(f"{sw} v{r}, v{t}")
            k += 1
        for r, t in zip(regs_, tmp): p(f"{op} v{r}, v{r}, v{t}")

STAMPS = 0
WS_STAMP = 0x3800000
WS_FLAG = 0x20000
STAMP_SET = None
def stamp(p, i):
    if STAMPS and STAMP_SET is not None and i not in (0, 15):
        if str(i) not in STAMP_SET: return
        i = 1 + STAMP_SET.index(str(i))
    elif isinstance(i, str): return
    if STAMPS:
        p(f"{'s_memrealtime' if STAMPS == 1 else 's_memtime'} s[{64+2*i}:{65+2*i}]")
def stamp_begin(p):
    if STAMPS:
        for i in range(64, 96): p(f"s_mov_b32 s{i}, 0")
        stamp(p, 0)
        p("s_mov_b32 s99, s2")
        p(f"s_load_dwordx2 s[96:97], s[0:1], {KA_WS}")
def stamp_end(p, kidx, last=15):
    if STAMPS:
        p("s_waitcnt vmcnt(0)")
        stamp(p, last)
        p("s_waitcnt lgkmcnt(0)")
        p("s_mov_b64 exec, -1")
        p("v_cmp_eq_u32 s[100:101], 0, v0")
        p("s_and_saveexec_b64 s[100:101], s[100:101]")
        p(f"s_cbranch_execz L_stamp_skip{kidx}")
        p("s_lshl_b32 s99, s99, 6")
        p(f"s_add_u32 s99, s99, {WS_STAMP + kidx*65536}")
        p("s_add_u32 s96, s96, s99")
        p("s_addc_u32 s97, s97, 0")
        for i in range(16): p(f"v_mov_b32 v{4+i}, s{64+2*i}")
        p("v_mov_b32 v2, 0")
        for i in range(4): p(f"global_store_dwordx4 v2, v[{4+4*i}:{7+4*i}], s[96:97] offset:{16*i}")
        p(f"L_stamp_skip{kidx}:")

def emit_gaps(p, mf, sal, mem, val):
    for g in range(len(mf)):
        p(mf[g])
        for x in sal[g] + mem[g] + val[g]: p(x)

def pack_gaps(NG, mems, valus, mem_lo=0, mem_hi=None, val_lo=0, val_hi=None):
    sal = [[] for _ in range(NG)]; mem = [[] for _ in range(NG)]; val = [[] for _ in range(NG)]
    cost = [0]*NG
    mem_hi = NG if mem_hi is None else mem_hi
    val_hi = NG if val_hi is None else val_hi
    for k, (sl, ins, c) in enumerate(mems):
        g = mem_lo + (k * (mem_hi - mem_lo)) // len(mems)
        if sl:
            if g == 0: sal[0] += sl + (["s_nop 0"] if any("m0" in x for x in sl) else [])
            else: sal[g-1] += sl
        mem[g].append(ins); cost[g] += c
    if valus:
        total = sum(cost[val_lo:val_hi]) + len(valus)
        n = val_hi - val_lo
        acc = 0; k = 0
        for g in range(val_lo, val_hi):
            target = (total * (g - val_lo + 1)) / n
            acc += cost[g]
            while k < len(valus) and (acc + 1 <= target + 1e-9 or g == val_hi - 1):
                val[g].append(valus[k]); k += 1; acc += 1
    return sal, mem, val

def interleave(a_, b_):
    if not b_: return list(a_)
    if not a_: return list(b_)
    out = []; n = len(a_) + len(b_); ia = ib = 0
    for i in range(n):
        if ib < len(b_) and (ia >= len(a_) or (ib + 0.5) * n / len(b_) <= i + 1):
            out.append(b_[ib]); ib += 1
        else:
            out.append(a_[ia]); ia += 1
    return out

OPT = {}
```

```python
import re

class Prog:
    def __init__(self):
        self.items = []
    def __call__(self, s):
        for line in s.split("\n"):
            line = line.strip()
            if line:
                self.items.append(line)
    def text(self):
        out = []
        for it in self.items:
            if it.endswith(":") or it.startswith(".") or it.startswith(";"):
                out.append(it)
            else:
                out.append("  " + it.split(" ;REQ")[0])
        return "\n".join(out) + "\n"

def R(f, b, n=1):
    return f"{f}{b}" if n == 1 else f"{f}[{b}:{b+n-1}]"
def v(b, n=1): return R("v", b, n)
def a(b, n=1): return R("a", b, n)
def s(b, n=1): return R("s", b, n)

_reg = re.compile(r"^(-|abs\(|\|)?([vas])(?:(\d+)|\[(\d+):(\d+)\])\)?\|?$")
def regs(op):
    op = op.strip()
    if op in ("vcc",): return {("s", 106), ("s", 107)}
    if op == "vcc_lo": return {("s", 106)}
    if op == "vcc_hi": return {("s", 107)}
    if op == "exec": return {("s", 126), ("s", 127)}
    if op == "m0": return {("s", 124)}
    m = _reg.match(op)
    if not m: return set()
    f = m.group(2)
    if m.group(3) is not None: return {(f, int(m.group(3)))}
    return {(f, i) for i in range(int(m.group(4)), int(m.group(5)) + 1)}

TRANS = ("v_exp_f32", "v_log_f32", "v_rcp_f32", "v_rsq_f32", "v_sqrt_f32", "v_sin_f32", "v_cos_f32")

class I:
    def __init__(self, text):
        self.text = text
        t = text.split(";")[0].strip()
        parts = t.split(None, 1)
        self.op = parts[0]
        rest = parts[1] if len(parts) > 1 else ""
        ops = [x.strip() for x in re.split(r",(?![^\[]*\])", rest)] if rest else []
        self.mods = ""
        if ops:
            l = ops[-1].split(None, 1)
            ops[-1] = l[0]
            self.mods = l[1] if len(l) > 1 else ""
        self.ops = ops
        op = self.op
        self.kind = "other"
        self.w = set(); self.r = set()
        self.ws = 1
        self.dpp = "_dpp" in op or "row_" in self.mods or "quad_perm" in self.mods
        if op.startswith("v_mfma"):
            self.kind = "mfma"
            self.D = regs(ops[0]); self.A = regs(ops[1]); self.B = regs(ops[2]); self.C = regs(ops[3])
            self.w = set(self.D); self.r = self.A | self.B | self.C
            self.passes = 4 if "16x16x32" in op else 8 if "32x32x16" in op else None
            assert self.passes, op
        elif op.startswith("v_"):
            self.kind = "valu"
            if op.startswith("v_permlane") and "swap" in op:
                self.w = regs(ops[0]) | regs(ops[1]); self.r = set(self.w)
            elif op.startswith("v_cmp"):
                self.w = regs(ops[0])
                for o in ops[1:]: self.r |= regs(o)
            elif op.startswith(("v_add_co", "v_sub_co", "v_addc_co", "v_subb_co")):
                self.w = regs(ops[0]) | regs(ops[1])
                for o in ops[2:]: self.r |= regs(o)
            elif op == "v_nop":
                pass
            else:
                self.w = regs(ops[0])
                for o in ops[1:]: self.r |= regs(o)
                if op.startswith(("v_fmac", "v_dot2c", "v_writelane")) or self.dpp or "sdwa" in op:
                    self.r |= regs(ops[0])
                if op.startswith("v_cndmask") and len(ops) == 3:
                    self.r |= regs("vcc")
            self.trans = op.replace("_e32", "").replace("_e64", "") in TRANS
        elif op.startswith("ds_"):
            self.kind = "ds"
            if op.startswith(("ds_read", "ds_bpermute", "ds_swizzle", "ds_permute")):
                self.w = regs(ops[0])
                for o in ops[1:]: self.r |= regs(o)
            else:
                for o in ops: self.r |= regs(o)
        elif op.startswith(("buffer_", "global_")):
            self.kind = "vmem"
            self.lds = " lds" in (" " + self.mods) or "_lds_" in op
            self.store = "store" in op or "atomic" in op
            if op in ("buffer_inv", "buffer_wbl2"):
                pass
            elif self.lds:
                for o in ops: self.r |= regs(o)
                self.r |= regs("m0")
            elif self.store:
                for o in ops: self.r |= regs(o)
                if op.startswith("buffer_"): self.data = regs(ops[0])
                else: self.data = regs(ops[1])
                if "atomic" in op and "sc0" in self.mods:
                    self.w = regs(ops[0])
            else:
                self.w = regs(ops[0])
                for o in ops[1:]: self.r |= regs(o)
        elif op.startswith("s_"):
            self.kind = "salu"
            if op == "s_nop": self.ws = int(ops[0], 0) + 1
            elif op.startswith(("s_load", "s_memtime", "s_memrealtime", "s_buffer_load")):
                self.kind = "smem"; self.w = regs(ops[0])
                for o in ops[1:]: self.r |= regs(o)
            elif op.startswith(("s_cmp", "s_cbranch", "s_branch", "s_waitcnt", "s_barrier", "s_endpgm", "s_setprio", "s_bitcmp", "s_sleep", "s_setpc")):
                for o in ops: self.r |= regs(o)
            else:
                self.w = regs(ops[0])
                for o in ops[1:]: self.r |= regs(o)
                if "saveexec" in op: self.w |= regs("exec")

def linearize(items, start=None, taken=(), loops=2, stop_at=None):
    lab = {}
    for i, it in enumerate(items):
        if it.endswith(":"): lab[it[:-1]] = i
    pc = lab[start] if start else 0
    seen = {}
    out = []
    tk = {}
    while pc < len(items):
        it = items[pc]
        if it.endswith(":") or it.startswith(".") or it.startswith(";"):
            pc += 1; continue
        ins = I(it); ins.pc = pc
        out.append(ins)
        if ins.op == "s_endpgm": break
        if ins.op == "s_branch":
            pc = lab[ins.ops[0]];
            seen[("b", ins.pc)] = seen.get(("b", ins.pc), 0) + 1
            if seen[("b", ins.pc)] > 3: break
            continue
        if ins.op == "s_cbranch_vccnz" or (ins.op == "s_cbranch_scc1" and ("_st" in ins.ops[0] or "_walkdone" in ins.ops[0])):
            pc += 1; continue
        if ins.op.startswith("s_cbranch"):
            tgt = lab[ins.ops[0]]
            if tgt <= pc:
                c = seen.get(pc, 0)
                if c < loops - 1:
                    seen[pc] = c + 1; pc = tgt; continue
                seen[pc] = 0
            elif ins.ops[0] in taken and tk.get(pc, 0) < 1:
                tk[pc] = 1
                pc = tgt; continue
        pc += 1
    return out

def check(trace, name=""):
    errs = []
    n = len(trace)
    def dist(i, j):
        return sum(trace[k].ws for k in range(i + 1, j))
    isv = lambda rs: {x for x in rs if x[0] in "va"}
    iss = lambda rs: {x for x in rs if x[0] == "s"}
    for j, c in enumerate(trace):
        d = 0
        for i in range(j - 1, max(-1, j - 24), -1):
            p = trace[i]
            need = 0; why = ""
            def req(nn, w):
                nonlocal need, why
                if nn > need: need, why = nn, w
            if p.kind == "valu":
                pw = isv(p.w); ps = iss(p.w)
                if c.kind == "mfma" and pw & c.r: req(2, "valu->mfma")
                if c.kind == "valu":
                    if p.trans and not c.trans and pw & c.r: req(1, "trans->valu")
                    if c.op.startswith("v_permlane") and pw & c.r: req(2, "valu->permlane")
                    if c.op.startswith(("v_readlane", "v_readfirstlane")) and pw & c.r: req(1, "valu->readlane")
                    if c.dpp and pw & c.r: req(2, "valu->dpp")
                    if ps & c.r: req(4 if c.op.startswith(("v_readlane", "v_writelane")) else 2, "valu sgpr->valu")
                    if "sdwa" in p.op and pw & (c.r | c.w): req(1, "sdwa->valu")
                if c.kind == "vmem" and ps & c.r: req(5, "valu sgpr->vmem")
                if p.trans and c.kind in ("vmem", "ds", "mfma") and pw & c.r: req(2 if c.kind == "mfma" else 1, "trans->mem")
            if p.kind == "mfma":
                big = 8 if p.passes == 4 else 12
                if c.kind == "valu" and p.D & (c.r | c.w): req(big, "mfma D->valu")
                if c.kind in ("vmem", "ds") and p.D & (c.r | c.w): req(big, "mfma D->mem")
                if c.kind == "mfma":
                    if p.D & (c.A | c.B): req(big, "mfma D->A/B")
                    if p.D & c.C and not (p.D == c.C and p.passes == c.passes): req(6 if p.passes == 4 else 10, "mfma D->C partial")
                    if p.D & c.D and not (p.D == c.C): req(6 if p.passes == 4 else 10, "mfma D->D waw (no chain)")
                if c.kind == "valu" and p.C & c.w: req(3 if p.passes == 4 else 7, "mfma C war")
            if p.kind == "salu" and ("s", 124) in p.w and c.kind == "vmem" and c.lds: req(1, "m0->dma")
            if p.kind == "vmem" and getattr(p, "store", False) and ("x4" in p.op or "x3" in p.op) and hasattr(p, "data"):
                if p.data & c.w: req(2 if c.kind == "valu" else 1, "store data war")
            if need > d:
                errs.append(f"{name}: hazard {why} need {need} have {d}: [{p.pc}] {p.text}  ->  [{c.pc}] {c.text}")
            d += p.ws
            if d >= 20: break
    lastw = {}
    for c in trace:
        if ";REQ" in c.text:
            for rq in c.text.split(";REQ")[1].split("|"):
                rq = rq.strip()
                for dreg in I(rq).w:
                    if lastw.get(dreg) != rq:
                        errs.append(f"{name}: REQ violated at [{c.pc}] {c.text}: last writer {lastw.get(dreg)}")
        for dreg in c.w: lastw[dreg] = c.text.split(";")[0].strip()
    vm = []; lg = []
    for j, c in enumerate(trace):
        if c.op == "s_waitcnt":
            t = c.text
            m = re.search(r"vmcnt\((\d+)\)", t)
            if m:
                k = int(m.group(1)); assert k <= 63
                vm = vm[len(vm) - k:] if k < len(vm) else vm
                if k == 0: vm = []
            m = re.search(r"lgkmcnt\((\d+)\)", t)
            if m:
                k = int(m.group(1)); assert k <= 15
                if k == 0: lg = []
                else:
                    sm = [x for x in lg if x.kind == "smem"]; dd = [x for x in lg if x.kind != "smem"]
                    lg = sm + (dd[len(dd) - k:] if k < len(dd) else dd)
            continue
        for lst, nm in ((vm, "vmcnt"), (lg, "lgkmcnt")):
            for p in lst:
                if p.w & (c.r | c.w):
                    if p.kind == c.kind and not (p.w & c.r) and p.kind != "smem":
                        continue
                    errs.append(f"{name}: missing {nm} wait: [{p.pc}] {p.text}  ->  [{c.pc}] {c.text}")
        if c.kind == "vmem":
            vm.append(c)
            if len(vm) > 63:
                errs.append(f"{name}: vmcnt overflow at [{c.pc}] {c.text}"); vm = vm[-63:]
        if c.kind in ("ds", "smem"):
            lg.append(c)
    return errs

import subprocess, os, tempfile
def offsets(items):
    txt = '.amdgcn_target "amdgcn-amd-amdhsa--gfx950"\n.text\n.p2align 12\n'
    out = []
    n = 0
    for i, it in enumerate(items):
        if it.endswith(":") or it.startswith(".") or it.startswith(";"):
            out.append(it)
        else:
            out.append(f"ZZ{i}:"); out.append(it)
    d = tempfile.mkdtemp()
    open(d + "/a.s", "w").write(txt + "\n".join(out) + "\n")
    r = subprocess.run(["clang", "-x", "assembler", "-target", "amdgcn-amd-amdhsa", "-mcpu=gfx950", "-c", d + "/a.s", "-o", d + "/a.o"], capture_output=True, text=True)
    assert r.returncode == 0, r.stderr[:3000]
    r = subprocess.run(["llvm-readelf", "-s", "--wide", d + "/a.o"], capture_output=True, text=True)
    off = [None] * len(items)
    for line in r.stdout.split("\n"):
        f = line.split()
        if len(f) >= 8 and f[7].startswith("ZZ"):
            off[int(f[7][2:])] = int(f[1], 16)
    return off

def add_walk(p, tag, swave, end_label=None):
    items = p.items
    if ";@BODY" not in items: return 0
    bi = items.index(";@BODY")
    items[bi:bi+1] = [f"s_branch L_{tag}_body", ".p2align 12", f"L_{tag}_body:"]
    sites = {}
    i = 0
    while i < len(items):
        if items[i].startswith(";@WALK"):
            f = items[i].split()
            k = int(f[1]); waves = [int(c) for c in f[2]]
            sites[k] = waves
            code = ["s_mov_b64 vcc, -1"]
            for w in waves:
                code += [f"s_cmp_eq_u32 s{swave}, {w}", f"s_cbranch_scc1 @{k}@{w}"]
            code += [f"L_{tag}_walkdone{k}:", "s_mov_b64 vcc, 0"]
            items[i:i+1] = code
        i += 1
    k = 0
    zone_of = []
    while True:
        off = offsets([x if "@" not in x or x.startswith(";") else "s_nop 0" for x in items])
        b = items.index(f"L_{tag}_body:")
        base = next(o for o in off[b:] if o is not None)
        endi = items.index(end_label + ":") if end_label else len(items)
        cand = [i for i in range(b + 1, endi) if off[i] is not None and off[i] - base >= k * 4096]
        if not cand: break
        def in_dispatch(i):
            j = i - 1
            while j > b:
                if items[j] == "s_mov_b64 vcc, 0": return False
                if items[j] == "s_mov_b64 vcc, -1": return True
                if i - j > 16: return False
                j -= 1
            return False
        cand = [i for i in cand[:40] if not in_dispatch(i)]
        pos = cand[0]
        for i in cand[:8]:
            if off[i] - base - k * 4096 > 40: break
            j = i - 1
            while off[j] is None: j -= 1
            if items[j].startswith("v_mfma"):
                pos = i; break
        z = 0
        for it in items[b:pos]:
            if it.startswith(";@ZONE"): z = int(it.split()[1])
        zone_of.append(z)
        items[pos:pos] = [f"L_{tag}_st{k}:", f"s_cbranch_vccnz @{k}"]
        k += 1
    n = k
    nxt = {}; first = {}
    for z, waves in sites.items():
        pages = [kk for kk in range(n) if zone_of[kk] == z]
        for wi, w in enumerate(waves):
            mine = pages[wi::len(waves)]
            first[(z, w)] = f"L_{tag}_st{mine[0]}" if mine else f"L_{tag}_walkdone{z}"
            for a_, b_ in zip(mine, mine[1:] + [None]):
                nxt[a_] = f"L_{tag}_st{b_}" if b_ is not None else f"L_{tag}_walkdone{z}"
    for i, it in enumerate(items):
        if it.startswith("s_cbranch_vccnz @"):
            items[i] = "s_cbranch_vccnz " + nxt[int(it.split("@")[1])]
        elif it.startswith("s_cbranch_scc1 @"):
            f = it.split("@")
            items[i] = "s_cbranch_scc1 " + first[(int(f[1]), int(f[2]))]
    return zone_of

def req(ins, sal):
    return ins + " ;REQ " + " | ".join(sal) if sal else ins
```

```python
from common import *

MF = "v_mfma_f32_16x16x32_bf16"
vKa = [4, 5, 6, 7]
vVa = [8, 9, 10, 11, 12, 13, 14, 15]
vDK, vDV, vDW, vH = 16, 17, 18, 19
vL = [20, 21, 22, 23]
vM = [24, 25, 26, 27]
vT = [28, 29, 30, 31]
vNEG = 32
vTMP = 48
vQ = 64
vS = 128
vP = 192
vONE = 224
vLS = 228
aO = 0
aK = 128
aV = 192
sK, sV, sW, sH, sO = 4, 8, 12, 16, 20
sWave, sM0K, sM0V, sOffKV, sCnt, sRetry, sT0 = 24, 25, 26, 27, 28, 29, 30
SLOT = 16384
LDS_K, LDS_V, LDS_X = 0, 65536, 131072
LDS_BYTES = 163840

def lane_consts(p, tid=0, lane=1, tmp=(2, 3, 28, 29, 30, 31), want_k=True):
    t0, t1, t2, t3, t4, t5 = tmp
    p(f"v_and_b32 v{lane}, 63, v{tid}")
    p(f"v_and_b32 v{t0}, 15, v{lane}")
    p(f"v_lshrrev_b32 v{t1}, 4, v{lane}")
    if want_k:
        p(f"v_lshrrev_b32 v{t2}, 2, v{t0}")
        p(f"v_lshlrev_b32 v{t2}, 12, v{t2}")
        p(f"v_and_b32 v{t3}, 3, v{t0}")
        p(f"v_lshl_add_u32 v{t2}, v{t3}, 8, v{t2}")
        p(f"v_xor_b32 v{t3}, v{t1}, v{t0}")
        p(f"v_lshl_add_u32 v{vKa[0]}, v{t3}, 4, v{t2}")
        for s_ in range(1, 4): p(f"v_xor_b32 v{vKa[s_]}, {s_<<6}, v{vKa[0]}")
    p(f"v_lshrrev_b32 v{t2}, 2, v{t0}")
    p(f"v_lshl_add_u32 v{t3}, v{t1}, 4, v{t2}")
    p(f"v_lshlrev_b32 v{t3}, 8, v{t3}")
    p(f"v_and_b32 v{t4}, 1, v{t1}")
    p(f"v_lshl_add_u32 v{t2}, v{t4}, 2, v{t2}")
    p(f"v_lshl_add_u32 v{t3}, v{t2}, 5, v{t3}")
    p(f"v_and_b32 v{t4}, 3, v{t0}")
    p(f"v_lshl_add_u32 v{t3}, v{t4}, 3, v{t3}")
    p(f"v_add_u32 v{vVa[0]}, {LDS_V}, v{t3}")
    for d in range(1, 8): p(f"v_xor_b32 v{vVa[d]}, {d<<5}, v{vVa[0]}")

def kread(buf, unit_in_tile, slot):
    out = []
    for kt in range(2):
        for s_ in range(4):
            off = slot*SLOT + (2*unit_in_tile + kt)*1024
            out.append(f"ds_read_b128 {a(aK + buf*32 + (kt*4+s_)*4, 4)}, v{vKa[s_]} offset:{off}")
    return out

def vread(dst_file, dst_base, unit_in_tile, slot):
    out = []
    for dt in range(8):
        for hh in range(2):
            off = slot*SLOT + (2*unit_in_tile + hh)*1024
            out.append(f"ds_read_b64_tr_b16 {R(dst_file, dst_base + dt*4 + hh*2, 2)}, v{vVa[dt]} offset:{off}")
    return out

def qk_mfmas(sbuf, kbuf, czero=False):
    out = []
    for qt in range(4):
        for kt in range(2):
            d = vS + sbuf*32 + (qt*2+kt)*4
            for s_ in range(4):
                c = v(d, 4) if s_ else ("0" if czero else v(vNEG + qt*4, 4))
                out.append(f"{MF} {v(d,4)}, {a(aK + kbuf*32 + (kt*4+s_)*4, 4)}, {v(vQ + (qt*4+s_)*4, 4)}, {c}")
    return out

def pv_mfmas(pbuf, vbuf, mfmasum):
    out = []
    for dt in range(8):
        for qt in range(4):
            o = aO + (dt*4+qt)*4
            out.append(f"{MF} {a(o,4)}, {a(aV + vbuf*32 + dt*4, 4)}, {v(vP + pbuf*16 + qt*4, 4)}, {a(o,4)}")
    if mfmasum:
        for qt in range(4):
            out.append(f"{MF} {v(vLS+qt*4,4)}, {v(vONE,4)}, {v(vP + pbuf*16 + qt*4, 4)}, {v(vLS+qt*4,4)}")
    return out

def sm_ops(sbuf, pbuf, mfmasum):
    e, ad, c = [], [], []
    for i in range(32):
        r = vS + sbuf*32 + i
        e.append(f"v_exp_f32 v{r}, v{r}")
        if not mfmasum: ad.append(f"v_add_f32 v{vL[i//8]}, v{vL[i//8]}, v{r}")
    for j in range(16):
        r = vS + sbuf*32 + 2*j
        c.append(f"v_cvt_pk_bf16_f32 v{vP + pbuf*16 + j}, v{r}, v{r+1}")
    return e, ad, c

def dma_group(srd_, voff, soff, m0expr):
    return m0expr, [f"buffer_load_dwordx4 v{voff}, {s(srd_,4)}, s{soff} offen offset:{n*1024} lds" for n in range(4)]

def schedule(p, mf, sm=None, ds=(), dma=(), pre=(), post=(), extra_valu=(), ds_hi=None):
    NG = len(mf)
    sal = [[] for _ in range(NG)]; mem = [[] for _ in range(NG)]; val = [[] for _ in range(NG)]
    cost = [0]*NG
    for g, lst in dict(pre).items(): sal[g % NG] += lst
    e, ad, c = sm if sm else ([], [], [])
    epos = []
    if e:
        for i in range(32):
            g = (i * NG) // 32
            if NG < 64: g = (i * NG) // 32
            val[g].append(e[i]); cost[g] += 2; epos.append(g)
    free = [g for g in range(NG) if cost[g] == 0] or list(range(NG))
    hi = ds_hi if ds_hi is not None else NG - 8
    cand = [g for g in free if g < hi]
    if len(cand) < len(ds) + len(dma): cand = list(range(hi))
    items = list(ds)
    nd = len(dma)
    allm = [("ds", x) for x in items]
    for k, d in enumerate(dma):
        allm.insert(min(len(allm), (k * (len(items) + nd)) // max(nd, 1) + 2), ("dma", d))
    lastdma = -9
    for k, (kind, x) in enumerate(allm):
        g = cand[(k * len(cand)) // len(allm)] + (0 if items else 1)
        if kind == "ds":
            mem[g].append(x); cost[g] += 1
        else:
            if x[0]:
                if g == 0 or lastdma >= g - 1: mem[g].append(x[0] + "\ns_nop 0")
                else: sal[g-1].append(x[0])
            mem[g].append(x[1]); cost[g] += 2
            lastdma = g
    def place(ins, earliest):
        best = None
        for lim in (2, 3, 4, 99):
            for g in range(earliest, min(NG, earliest + (6 if lim < 99 else NG))):
                if cost[g] + 1 <= lim:
                    best = g; break
            if best is not None: break
        if best is None: best = NG - 1
        val[best].append(ins); cost[best] += 1
    tail = []
    work = []
    for i in range(len(ad)): work.append((epos[i] + 1, 0, ad[i]))
    for j in range(len(c)): work.append((epos[2*j+1] + 1, 1, c[j]))
    work.sort(key=lambda x: (x[0], -x[1]))
    for ear, _, ins in work:
        if ear >= NG: tail.append(ins)
        else: place(ins, ear)
    for k, ins in enumerate(extra_valu): place(ins, (k * NG) // len(extra_valu))
    for g in range(NG):
        p(mf[g])
        for x in sal[g] + mem[g] + val[g]: p(x)
    if tail: p("s_nop 0")
    for x in tail: p(x)
    for x in post: p(x)
    return sum(max(2, cc) for cc in cost)

def gen_attn(p, mfmasum=False, walk=True, fused=False):
    import k_mega
    L = "k_attn_kernel"
    header(p, L)
    p("s_cmp_ge_u32 s2, 256")
    p("s_cbranch_scc1 L_attn_end")
    stamp_begin(p)
    p(f"s_load_dwordx2 s[46:47], s[0:1], {KA_WS}")
    p(f"s_load_dwordx2 s[{sW}:{sW+1}], s[0:1], {KA_WQ}")
    p(f"s_load_dwordx2 s[{sK}:{sK+1}], s[0:1], {KA_K}")
    p(f"s_load_dwordx2 s[{sV}:{sV+1}], s[0:1], {KA_V}")
    p(f"s_load_dwordx2 s[52:53], s[0:1], {KA_WO}")
    p(f"s_load_dwordx2 s[56:57], s[0:1], {KA_W1}")
    p(f"s_load_dwordx2 s[60:61], s[0:1], {KA_W2}")
    p(f"s_load_dwordx2 s[48:49], s[0:1], {KA_X}")
    p(f"s_load_dwordx2 s[50:51], s[0:1], {KA_OUT}")
    p("s_bfe_u32 s40, s2, 0x20001")
    p("s_lshl_b32 s40, s40, 3")
    p("s_bfe_u32 s41, s2, 0x30003")
    p("s_add_u32 s40, s40, s41")
    p("s_and_b32 s41, s2, 1")
    p("s_lshl_b32 s41, s41, 2")
    p("s_lshr_b32 s42, s2, 6")
    p("s_add_u32 s41, s41, s42")
    p("v_lshrrev_b32 v2, 6, v0")
    p("v_and_b32 v1, 63, v0")
    p(f"v_readfirstlane_b32 s{sWave}, v2")
    p("v_lshrrev_b32 v2, 4, v1")
    p("v_and_b32 v3, 15, v1")
    p(f"v_lshlrev_b32 v{vH}, 4, v1")
    p("v_lshlrev_b32 v28, 2, v2")
    p("v_xor_b32 v28, v28, v3")
    p(f"s_lshl_b32 s43, s{sWave}, 12")
    p("v_lshl_add_u32 v29, v2, 8, s43")
    p("v_lshlrev_b32 v30, 5, v29")
    p(f"v_lshl_add_u32 v{vDW}, v28, 4, v30")
    p("s_lshl_b32 s42, s41, 4")
    p(f"s_lshl_b32 s44, s{sWave}, 2")
    p("s_add_u32 s44, s44, s42")
    p("s_waitcnt lgkmcnt(0)")
    p("s_lshl_b32 s42, s44, 14")
    p(f"s_add_u32 s42, s42, {WS_H}")
    srd(p, sH, 46, 65536, "s42")
    srd(p, sO, 46, 4096, WS_MOD)
    p("s_lshl_b32 s42, s40, 8")
    srd(p, sW, sW, 0, "s42")
    p(f"s_sub_u32 s{sW+2}, {512*4096*2}, s42")
    p(f"s_mov_b32 s{sM0K}, s43")
    p(f"s_add_u32 s{sM0V}, s43, {LDS_V}")

    vRing = lambda st: 32 + ((st + 1) & 3) * 16
    vCon = lambda st: 96 + (st & 1) * 16
    vTm = 24
    vACC = 128
    vWa = [8, 9, 10, 11]; vCa = 12
    issued = []
    def w_loads(T):
        out = []
        for n in range(4):
            sal = [f"s_mov_b32 s{sT0+n}, {T*64*8192 + n*(4*8192 - 1024)}", f"s_add_u32 m0, s{sM0V}, {(T & 3)*SLOT}"]
            out.append((sal, req(f"buffer_load_dwordx4 v{vDW}, {s(sW,4)}, s{sT0+n} offen offset:{n*1024} lds", sal), ("W", T)))
        return out
    def b_loads(st):
        out = []
        for qt in range(4):
            sal = [f"s_mov_b32 s{sT0+4+qt}, {qt*16384 + st*1024}"]
            out.append((sal, req(f"buffer_load_dwordx4 {v(vRing(st) + qt*4, 4)}, v{vH}, {s(sH,4)}, s{sT0+4+qt} offen", sal), ("B", st)))
        return out
    def kv_group(which, tile):
        srd_, voff, m0b = (sK, vDK, sM0K) if which == "K" else (sV, vDV, sM0V)
        out = []
        for n in range(4):
            sal = [f"s_mov_b32 s{sT0+8}, {tile*SLOT}", f"s_add_u32 m0, s{m0b}, {(tile&3)*SLOT}"]
            out.append((sal, req(f"buffer_load_dwordx4 v{voff}, {s(srd_,4)}, s{sT0+8} offen offset:{n*1024} lds", sal), (which, tile)))
        return out
    def emit_loads(lst):
        last = None
        for sal, ins, tag in lst:
            sl = [x for x in sal if not ("m0" in x and x == last)]
            for x in sl:
                p(x)
                if "m0" in x: last = x
            if sl and "m0" in sl[-1]: p("s_nop 0")
            p(ins); issued.append(tag)
    def vm_after(tag):
        idx = max(i for i, t in enumerate(issued) if t == tag)
        return len(issued) - 1 - idx
    p(f"s_lshl_b32 s{sT0}, s{sWave}, 10")
    p(f"s_add_u32 m0, s{sT0}, {LDS_X}")
    p("s_nop 0")
    p(f"buffer_load_dwordx4 v{vH}, {s(sO,4)}, s{sT0} offen lds"); issued.append(("C", 0))
    emit_loads(b_loads(0) + w_loads(0) + b_loads(1) + w_loads(1))
    p("s_lshl_b32 s42, s40, 19")
    srd(p, sK, sK, 524288, "s42")
    srd(p, sV, sV, 524288, "s42")
    p("s_lshl_b32 s42, s44, 17")
    p("s_lshl_b32 s45, s40, 12")
    p("s_add_u32 s42, s42, s45")
    p(f"s_add_u32 s42, s42, {WS_O}")
    srd(p, sO, 46, 3*131072 + 4096, "s42")
    srd(p, 52, 52, 4096*512*2)
    srd(p, 56, 56, 512*1376*2)
    srd(p, 60, 60, 512*1376*2)
    p(f"s_mov_b32 s{sRetry}, 0")
    p(f"s_lshl_b32 s42, s{sWave}, 2")
    p("v_or_b32 v28, s42, v2")
    p("v_xor_b32 v28, v28, v3")
    p(f"v_lshl_add_u32 v{vDK}, v28, 4, v29")
    p(f"s_and_b32 s42, s{sWave}, 1")
    p("s_lshl_b32 s42, s42, 2")
    p("v_or_b32 v28, s42, v2")
    p("v_lshlrev_b32 v28, 1, v28")
    p("v_xor_b32 v28, v28, v3")
    p(f"v_lshl_add_u32 v{vDV}, v28, 4, v29")
    p("v_lshrrev_b32 v28, 2, v3")
    p("v_lshl_add_u32 v28, v2, 4, v28")
    p("v_lshlrev_b32 v28, 8, v28")
    p("v_lshl_add_u32 v28, v3, 4, v28")
    p(f"v_add_u32 v{vWa[0]}, {LDS_V}, v28")
    for s_ in range(1, 4): p(f"v_xor_b32 v{vWa[s_]}, {s_<<6}, v{vWa[0]}")
    p(f"v_lshlrev_b32 v{vCa}, 6, v2")
    p(f"v_add_u32 v{vCa}, {LDS_X}, v{vCa}")
    p("v_lshrrev_b32 v28, 2, v3")
    p("v_lshlrev_b32 v28, 12, v28")
    p("v_and_b32 v29, 3, v3")
    p("v_lshl_add_u32 v28, v29, 8, v28")
    p("v_xor_b32 v29, v2, v3")
    p(f"v_lshl_add_u32 v{vKa[0]}, v29, 4, v28")
    for s_ in range(1, 4): p(f"v_xor_b32 v{vKa[s_]}, {s_<<6}, v{vKa[0]}")
    for r in [20, 21, 22, 23, 24, 25, 26, 27, 31] + list(range(96, 103)) + list(range(232, 236)) + [248]: p(f"v_mov_b32 v{r}, 0")
    if walk: p(";@WALK 0 0123")
    for i in range(128): p(f"v_accvgpr_write_b32 a{i}, 0")
    if walk: p(";@BODY")
    def wread(st):
        T, u = st >> 1, st & 1
        out = []
        for dt in range(8):
            for hh in range(2):
                off = (T & 3)*SLOT + (2*u + hh)*1024 + (dt & 1)*8
                out.append(f"ds_read_b64_tr_b16 {a(aV + (st & 1)*32 + dt*4 + hh*2, 2)}, v{vWa[dt >> 1]} offset:{off}")
        return out
    def cread(st):
        T, u = st >> 1, st & 1
        o = T*256 + u*32
        c = vCon(st)
        return [f"ds_read_b128 {v(c,4)}, v{vCa} offset:{2048+o}", f"ds_read_b128 {v(c+4,4)}, v{vCa} offset:{2048+o+16}",
                f"ds_read_b128 {v(c+8,4)}, v{vCa} offset:{o}", f"ds_read_b128 {v(c+12,4)}, v{vCa} offset:{o+16}"]
    def modulate(st):
        out = []
        c = vCon(st)
        for qt in range(4):
            r = vRing(st) + qt*4
            for hf in range(2):
                for i in range(2*hf, 2*hf+2):
                    for e in range(2):
                        j = 2*i + e
                        out.append(f"v_fma_mix_f32 v{vTm+j}, v{r+i}, v{c+j}, v{c+8+j} op_sel:[{e},0,0] op_sel_hi:[1,0,0]")
                for i in range(2*hf, 2*hf+2):
                    out.append(f"v_cvt_pk_bf16_f32 v{r+i}, v{vTm+2*i}, v{vTm+2*i+1}")
        return out
    p(f"s_waitcnt vmcnt({vm_after(('W',0))})")
    p("s_barrier")
    stamp(p, 1)
    for x in cread(0) + cread(1) + wread(0)[:8]: p(x)
    emit_loads(b_loads(2))
    p("s_waitcnt lgkmcnt(12)")
    for x in wread(0)[8:]: p(x)
    m0_ = modulate(0)
    for x in m0_[:24]: p(x)
    emit_loads(w_loads(2))
    for x in m0_[24:]: p(x)
    kvq = {7: kv_group("K",0), 8: kv_group("K",1), 9: kv_group("V",0), 10: kv_group("K",2), 11: kv_group("V",1), 12: kv_group("K",3), 13: kv_group("V",2)}
    def qconv(s_):
        out = []
        for qt in range(4):
            d_ = vQ + (qt*4+s_)*4
            for t in range(2):
                src = vACC + ((2*s_+t)*4+qt)*4
                out.append(f"v_cvt_pk_bf16_f32 v{d_+2*t}, v{src}, v{src+1}")
                out.append(f"v_cvt_pk_bf16_f32 v{d_+2*t+1}, v{src+2}, v{src+3}")
        return out
    for st in range(16):
        T, u = st >> 1, st & 1
        need = []
        if st + 1 < 16: need.append(vm_after(("B", st+1)))
        if u == 1: need.append(vm_after(("W", T+1)) if T < 7 else vm_after(("K", 0)))
        p(f"s_waitcnt vmcnt({min(need)}) lgkmcnt(0)")
        if u == 1: p("s_barrier")
        mf = []
        for dt in range(8):
            for qt in range(4):
                d_ = vACC + (dt*4+qt)*4
                mf.append(f"{MF} {v(d_,4)}, {a(aV + (st & 1)*32 + dt*4, 4)}, {v(vRing(st) + qt*4, 4)}, {'0' if st == 0 else v(d_,4)}")
        ds = (wread(st+1) if st < 15 else kread(0, 0, 0) + kread(1, 1, 0))
        if st + 2 < 16: ds = interleave(ds, cread(st+2))
        ld = []
        if st + 3 < 16: ld += b_loads(st+3)
        if T + 3 < 8: ld += w_loads(T+3)[2*u:2*u+2]
        ld += kvq.get(st, [])
        mems = interleave([([], x, 1) for x in ds], [(sl, ins, 2) for sl, ins, tag in ld])
        for sl, ins, tag in ld: issued.append(tag)
        if st < 15:
            sal, mem, val = pack_gaps(32, mems, modulate(st+1), mem_hi=28)
        else:
            sal, mem, val = pack_gaps(32, mems, [], mem_hi=16)
            for s_ in range(3):
                cv = qconv(s_)
                for k, x in enumerate(cv): val[min(31, 8*s_ + 12 + k // 2)].append(x)
        emit_gaps(p, mf, sal, mem, val)
    stamp(p, 2)
    p("v_and_b32 v3, 15, v1")
    p("v_lshrrev_b32 v2, 4, v1")
    p("v_lshrrev_b32 v28, 2, v3")
    p("v_lshl_add_u32 v29, v2, 4, v28")
    p("v_lshlrev_b32 v29, 8, v29")
    p("v_and_b32 v30, 1, v2")
    p("v_lshl_add_u32 v28, v30, 2, v28")
    p("v_lshl_add_u32 v29, v28, 5, v29")
    p("v_and_b32 v30, 3, v3")
    p("v_lshl_add_u32 v29, v30, 3, v29")
    p(f"v_add_u32 v{vVa[0]}, {LDS_V}, v29")
    for x in qconv(3): p(x)
    for d in range(1, 8): p(f"v_xor_b32 v{vVa[d]}, {d<<5}, v{vVa[0]}")
    for q in range(4): p(f"v_mov_b32 v{vM[q]}, 0xff7fffff")
    if mfmasum:
        for r in range(4): p(f"v_mov_b32 v{vONE+r}, 0x3f803f80")
    if fused: k_mega.attn_side_setup(p)
    sPF = sW; sPFo = 40; sGW = 41
    p(f"s_lshl_b32 s{sGW}, s2, 2")
    p(f"s_add_u32 s{sGW}, s{sGW}, s{sWave}")
    p(f"s_lshl_b32 s{sGW}, s{sGW}, 13")
    p(f"v_lshlrev_b32 v{vTMP+1}, 7, v1")

    p("L_attn_restart:")
    p("s_waitcnt lgkmcnt(0)")
    zl = [f"v_mov_b32 v{r}, 0" for r in (range(vLS, vLS+16) if mfmasum else vL)]
    mf = qk_mfmas(0, 0, czero=True)
    val = [[] for _ in range(32)]
    for k, x in enumerate(zl): val[k // 2].append(x)
    for qt in range(3):
        for k in range(4):
            b = vS + qt*8 + 2*k
            val[qt*8 + 16 + k if qt*8 + 16 + k < 32 else 31].append(f"v_max3_f32 v{vM[qt]}, v{vM[qt]}, v{b}, v{b+1}")
    v31 = val[31]; val[31] = []
    emit_gaps(p, mf, [[]]*32, [[]]*32, val)
    for x in v31: p(x)
    p("s_nop 3")
    for k in range(4):
        b = vS + 24 + 2*k
        p(f"v_max3_f32 v{vM[3]}, v{vM[3]}, v{b}, v{b+1}")
    xlane_reduce(p, "v_max_f32", vM, vT)
    for qt in range(4):
        for r in range(4): p(f"v_sub_f32 v{vNEG+qt*4+r}, 0, v{vM[qt]}")
    for i in range(8): p(f"v_sub_f32 v{vS+i}, v{vS+i}, v{vM[i//8]}")
    subs = [f"v_sub_f32 v{vS+i}, v{vS+i}, v{vM[i//8]}" for i in range(8, 32)]
    p(f"s_mov_b32 s{sOffKV}, {4*SLOT}")
    p(f"s_mov_b32 s{sCnt}, 0")
    p(f"s_cmp_lt_u32 s{sGW}, {768*8192}")
    for r in range(3): p(f"s_cselect_b32 s{sPF+r}, s{56+r}, s{60+r}")
    p(f"s_and_b32 s{sPFo}, s{sGW}, {256*8192-1}")
    p(f"s_cmp_lt_u32 s{sGW}, {512*8192}")
    for r in range(3): p(f"s_cselect_b32 s{sPF+r}, s{52+r}, s{sPF+r}")
    p(f"s_cselect_b32 s{sPFo}, s{sGW}, s{sPFo}")
    p(f"buffer_load_dword v{vTMP+2}, v{vTMP+1}, {s(sPF,4)}, s{sPFo} offen")
    sTA, sTB, sTC = 40, 44, 45
    for r in (sTA, sTB, sTC): p(f"s_mov_b32 s{r}, 0x40000000")
    def pf_advance():
        o = [f"s_lshr_b32 s31, s{sGW}, 18", "s_lshl_b32 s31, s31, 2", f"s_add_u32 s31, s31, s{sWave}",
             "s_lshl_b32 s32, s31, 14", "s_add_u32 s33, s32, 8192", "s_lshl_b32 s31, s31, 13",
             "s_and_b32 s34, s39, 0x300000", "s_add_u32 s31, s31, s34", f"s_cmp_eq_u32 s{sCnt}, {OPT.get('pfit', 7)}",
             f"s_cselect_b32 s{sTA}, s32, 2.0", f"s_cselect_b32 s{sTB}, s33, 2.0", f"s_cselect_b32 s{sTC}, s31, 2.0"]
        return o
    touches = {"a": (60, sTA), "b": (60, sTB), "c": (56, sTA), "d": (56, sTB), "e": (52, sTC)}

    def period(u):
        do_qk = (u + 2 <= 63); do_sm = (0 <= u + 1 <= 63); do_pv = (u >= 0)
        mf = []
        if do_qk: mf += qk_mfmas((u+2) & 1, (u+2) & 1)
        if do_pv: mf += pv_mfmas(u & 1, u & 1, mfmasum)
        sm = sm_ops((u+1) & 1, (u+1) & 1, mfmasum) if do_sm else None
        ds = []
        kr = kread((u+3) & 1, (u+3) & 1, ((u+3) >> 1) & 3) if u + 3 <= 63 else []
        vr = vread("a", aV + ((u+1) & 1)*32, (u+1) & 1, ((u+1) >> 1) & 3) if u + 1 <= 63 else []
        while kr or vr:
            if kr: ds.append(kr.pop(0))
            if vr: ds.append(vr.pop(0))
        t = (u + 1) >> 1
        dma = []; pre = {}
        if u < 62:
            if (u & 1) == 1:
                pre[0] = ["s_waitcnt vmcnt(16)", "s_barrier"]
                for n in range(4):
                    dma.append((f"s_add_u32 m0, s{sM0K}, {(t & 3)*SLOT}" if n == 0 else None,
                                req(f"buffer_load_dwordx4 v{vDK}, {s(sK,4)}, s{sOffKV} offen offset:{n*1024} lds", [f"s_add_u32 m0, s{sM0K}, {(t & 3)*SLOT}"])))
            else:
                pre[0] = [f"s_sub_u32 s{sT0}, s{sOffKV}, {SLOT}"]
                pre[2] = [f"s_add_u32 s{sOffKV}, s{sOffKV}, {SLOT}"]
                for n in range(4):
                    dma.append((f"s_add_u32 m0, s{sM0V}, {((t+3) & 3)*SLOT}" if n == 0 else None,
                                req(f"buffer_load_dwordx4 v{vDV}, {s(sV,4)}, s{sT0} offen offset:{n*1024} lds", [f"s_add_u32 m0, s{sM0V}, {((t+3) & 3)*SLOT}", f"s_sub_u32 s{sT0}, s{sOffKV}, {SLOT}"])))
        NG = len(mf)
        if ds: pre.setdefault(NG-1, []).append("s_waitcnt lgkmcnt(0)")
        return mf, sm, ds, dma, pre

    mf, sm, ds, dma, pre = period(-1)
    e, ad, c = sm
    e = [ (subs[i] + "\n" if i < len(subs) else "") + e[i] for i in range(32)]
    schedule(p, mf, (e, ad, c), ds, dma, pre, ds_hi=len(mf)-4)
    stamp(p, 3)
    p("s_branch L_attn_p0")
    p(".p2align 6")
    p("L_attn_loop:")
    for u in range(1, 9):
        if u == 8: p("L_attn_p0:")
        mf, sm, ds, dma, pre = period(u)
        NG = len(mf)
        tl = OPT.get("touch", "xxecd")
        if fused and 1 <= u <= len(tl) and tl[u-1] in touches:
            sr, so = touches[tl[u-1]]
            dma.append((None, f"buffer_load_dword v{vTMP+2+u}, v{vTMP+1}, {s(sr,4)}, s{so} offen"))
        if u == 7 and fused:
            for k_, x in enumerate(pf_advance()): pre.setdefault(12 + 2*k_, []).append(x)
        if u == 5:
            pre.setdefault(NG-3, []).append(f"s_add_u32 s{sCnt}, s{sCnt}, 1")
            pre.setdefault(NG-2, []).append(f"s_cmp_eq_u32 s{sCnt}, 8")
        c_ = schedule(p, mf, sm, ds, dma, pre)
        if u == 1: print("attn period slots:", c_, "of", 2*len(mf))
        if u == 5: p("s_cbranch_scc1 L_attn_tail")
    p("s_branch L_attn_loop")
    p("L_attn_tail:")
    stamp(p, 4)
    if not fused:
        p(f"s_lshr_b32 s{sT0}, s2, 3")
        p(f"s_lshl_b32 s{sT0}, s{sT0}, 2")
        p(f"s_add_u32 s{sT0}, s{sT0}, s{sWave}")
        p(f"s_lshl_b32 s{sT0}, s{sT0}, 13")
        p(f"s_bfe_u32 s{sT0+1}, s2, 0x20001")
        p(f"s_lshl_b32 s{sT0+1}, s{sT0+1}, 20")
        p(f"s_add_u32 s{sT0}, s{sT0}, s{sT0+1}")
        p(f"buffer_load_dword v{vTMP+5}, v{vTMP+1}, s[52:55], s{sT0} offen")
    for u in (62, 63):
        mf, sm, ds, dma, pre = period(u)
        if u == 63: p("s_nop 1")
        if fused:
            for T in ((0, 1) if u == 62 else (2, 3)):
                dma += [("\n".join(sl), ins) for sl, ins, tag in k_mega.wo_dma(T)]
        schedule(p, mf, sm, ds, dma, pre, ds_hi=len(mf)-4)
    stamp(p, 5)
    if mfmasum:
        p("s_nop 7")
        for qt in range(4): p(f"v_mov_b32 v{vL[qt]}, v{vLS+qt*4}")
    else:
        xlane_reduce(p, "v_add_f32", vL, vT)
    vR = vNEG
    p("s_waitcnt vmcnt(16)")
    for qt in range(4): p(f"v_rcp_f32 v{vR+qt}, v{vL[qt]}")
    p(f"v_add_f32 v{vT[0]}, v{vL[0]}, v{vL[1]}")
    p(f"v_add_f32 v{vT[1]}, v{vL[2]}, v{vL[3]}")
    p(f"v_add_f32 v{vT[0]}, v{vT[0]}, v{vT[1]}")
    p(f"v_mov_b32 v{vT[1]}, {hexf(2.0**40)}")
    p(f"v_cmp_nlt_f32 s[{sT0+2}:{sT0+3}], v{vT[0]}, v{vT[1]}")
    p(f"s_cmp_lg_u64 s[{sT0+2}:{sT0+3}], 0")
    p(f"s_cselect_b32 s{sT0+1}, 1, 0")
    p(f"s_lshl_b32 s{sT0+2}, s{sWave}, 2")
    p(f"s_add_u32 s{sT0+2}, s{sT0+2}, {LDS_X}")
    p(f"v_mov_b32 v{vT[0]}, s{sT0+2}")
    p(f"v_mov_b32 v{vT[1]}, s{sT0+1}")
    p(f"v_mov_b32 v{vT[2]}, {LDS_X}")
    p(f"ds_write_b32 v{vT[0]}, v{vT[1]}")
    k = 0
    for qt in range(4):
        p(f"s_mov_b32 s{sT0+2}, {qt*131072}")
        for s_ in range(4):
            b = vS + (k & 3)*8; o = vP + (k & 3)*4; k += 1
            for t in range(2):
                for r in range(4): p(f"v_accvgpr_read_b32 v{b+4*t+r}, a{aO + ((2*s_+t)*4+qt)*4 + r}")
            if fused and k <= 12:
                sl, ins, tag = k_mega.wo_dma(4 + (k-1) // 4)[(k-1) % 4]
                for x in sl: p(x)
                p(f"v_mul_f32 v{b}, v{b}, v{vR+qt}")
                p(ins)
            else:
                p(f"v_mul_f32 v{b}, v{b}, v{vR+qt}")
            for r in range(1, 8): p(f"v_mul_f32 v{b+r}, v{b+r}, v{vR+qt}")
            for r in range(4): p(f"v_cvt_pk_bf16_f32 v{o+r}, v{b+2*r}, v{b+2*r+1}")
            p(f"buffer_store_dwordx4 {v(o,4)}, v{vH}, {s(sO,4)}, s{sT0+2} offen offset:{s_*1024}" + (" sc1" if fused and not OPT.get("plainO") else ""))
    stamp(p, 6)
    if fused:
        p("s_waitcnt vmcnt(0) lgkmcnt(0)")
        p("s_barrier")
        p(f"s_cmp_lg_u32 s{sRetry}, 0")
        p("s_cbranch_scc1 L_attn_voted")
    else:
        p(f"s_cmp_lg_u32 s{sRetry}, 0")
        p("s_cbranch_scc1 L_attn_end")
        p("s_waitcnt lgkmcnt(0)")
        p("s_barrier")
    p(f"ds_read_b128 {v(vNEG+4,4)}, v{vT[2]}")
    p("s_waitcnt lgkmcnt(0)")
    p(f"v_or_b32 v{vNEG+4}, v{vNEG+4}, v{vNEG+5}")
    p(f"v_or3_b32 v{vNEG+4}, v{vNEG+4}, v{vNEG+6}, v{vNEG+7}")
    p("s_nop 0")
    p(f"v_readfirstlane_b32 s{sT0+1}, v{vNEG+4}")
    p("s_nop 3")
    p(f"s_cmp_eq_u32 s{sT0+1}, 0")
    p("s_cbranch_scc0 L_attn_fallback")
    if fused:
        p("L_attn_voted:")
        k_mega.gen_tail(p)
    stamp_end(p, 1)
    p("L_attn_end:")
    p("s_endpgm")
    p("L_attn_fallback:")
    p(f"s_mov_b32 s{sRetry}, 1")
    p("s_waitcnt vmcnt(0)")
    p(f"v_lshrrev_b32 v{vT[0]}, 4, v{vH}")
    p(f"v_and_b32 v{vT[1]}, 15, v{vT[0]}")
    p(f"v_lshrrev_b32 v{vT[0]}, 4, v{vT[0]}")
    p(f"v_lshlrev_b32 v{vT[1]}, 8, v{vT[1]}")
    p(f"v_lshl_add_u32 v{vT[0]}, v{vT[0]}, 4, v{vT[1]}")
    p(f"s_mov_b32 s{sT0}, 0")
    for i in range(128): p(f"v_accvgpr_write_b32 a{i}, 0")
    p("L_attn_maxloop:")
    p(f"s_add_u32 s{sT0+1}, s{sT0}, 4096")
    for kt in range(2):
        for s_ in range(4):
            p(f"buffer_load_dwordx4 {a(aK + (kt*4+s_)*4, 4)}, v{vT[0]}, {s(sK,4)}, s{sT0+kt} offen offset:{s_*64}")
    p("s_waitcnt vmcnt(0)")
    for x in qk_mfmas(0, 0, czero=True): p(x)
    p("s_nop 7")
    for k in range(4):
        for qt in range(4):
            b = vS + qt*8 + 2*k
            p(f"v_max3_f32 v{vM[qt]}, v{vM[qt]}, v{b}, v{b+1}")
    p(f"s_add_u32 s{sT0}, s{sT0}, 8192")
    p(f"s_cmp_lt_u32 s{sT0}, 524288")
    p("s_cbranch_scc1 L_attn_maxloop")
    p("s_barrier")
    for w_, t in (("K",0),("K",1),("V",0),("K",2),("V",1),("K",3),("V",2)):
        emit_loads(kv_group(w_, t))
    p("s_waitcnt vmcnt(24)")
    p("s_barrier")
    for x in kread(0, 0, 0) + kread(1, 1, 0): p(x)
    p("s_branch L_attn_restart")
    if walk: print("attn pages:", add_walk(p, "attn", sWave, end_label="L_attn_end"))
    return L, descriptor(L, 512, 64, 256), f"grid=(256,1,1) block=(256,1,1) lds={163840 if fused else LDS_X + 4096}"
```

```python
from common import *
from k_pre import bf16_round, ln_stats
from k_tail import row_reduce8
MF = "v_mfma_f32_16x16x32_bf16"
SLOT = 16384
LDS_X = 131072
sWave = 24
sFL, sB, sOUT, sM1, sM2 = 4, 8, 12, 16, 20
sWO, sW1, sW2 = 52, 56, 60
vB = 19
A_hi = list(range(8, 16)); A_lo = list(range(20, 28))
vPOLL, vFLAG = 4, 5

class Track:
    def __init__(self, p): self.p = p; self.vm = []; self.lg = []
    def emit(self, x):
        if callable(x): x = x()
        tag = None
        if isinstance(x, tuple): x, tag = x
        if not x: return
        self.p(x)
        if x.startswith(("buffer_", "global_")): self.vm.append(tag)
        elif x.startswith("ds_"): self.lg.append(tag)
    def after(self, lst, tags):
        idx = [i for i, t in enumerate(lst) if t in tags]
        return len(lst) - 1 - max(idx) if idx else None
    def wait(self, vm=(), lg=()):
        def f():
            parts = []
            n = self.after(self.vm, vm) if vm else None
            if n is not None: parts.append(f"vmcnt({min(n, 63)})")
            n = self.after(self.lg, lg) if lg else None
            if n is not None: parts.append(f"lgkmcnt({min(n, 15)})")
            return "s_waitcnt " + " ".join(parts) if parts else ""
        return f
    def loads(self, lst):
        last = None
        for sal, ins, tag in lst:
            sl = [x for x in sal if not ("m0" in x and x == last)]
            for x in sl:
                self.p(x)
                if "m0" in x: last = x
            if sl and "m0" in sl[-1]: self.p("s_nop 0")
            self.emit((ins, tag))

def sync(p, k, stage, window, vpoll, st_pub=None, st_done=None, pre_barrier=True):
    if pre_barrier:
        stamp(p, f"e{k}")
        p("s_waitcnt vmcnt(0) lgkmcnt(0)")
        p("s_barrier")
    if st_pub is not None: stamp(p, st_pub)
    stamp(p, f"pub{k}")
    p(f"s_cmp_lg_u32 s{sWave}, 0")
    p(f"s_cbranch_scc1 L_sync{k}_a")
    p("s_mov_b64 exec, 1")
    p(f"s_mov_b32 s30, {stage*256*128}")
    p(f"buffer_store_dword v6, v{vFLAG}, {s(sFL,4)}, s30 offen sc1")
    p("s_mov_b64 exec, -1")
    p(f"L_sync{k}_a:")
    window(p)
    stamp(p, f"w{k}")
    p(f"s_cmp_lg_u32 s{sWave}, 0")
    p(f"s_cbranch_scc1 L_sync{k}_b")
    p("s_mov_b32 s31, 0")
    p(f"s_mov_b32 s30, {stage*256*128}")
    p(f"L_sync{k}_poll:")
    p(f"buffer_load_dword v7, v{vpoll}, {s(sFL,4)}, s30 offen sc1")
    p("s_add_u32 s31, s31, 1")
    p("s_waitcnt vmcnt(0)")
    p("v_cmp_ne_u32 s[32:33], 0, v7")
    p(f"s_cmp_gt_u32 s31, {1 << 18}")
    p(f"s_cbranch_scc1 L_sync{k}_b")
    p("s_cmp_eq_u64 s[32:33], -1")
    p(f"s_cbranch_scc0 L_sync{k}_poll")
    p(f"L_sync{k}_b:")
    p("s_barrier")
    if st_done is not None: stamp(p, st_done)

def gemm_steps(tr, NS, NN, aread, bfrag, vA, vACC, extra_mem, barrier_at, bwait, valu=None):
    NG = 2*NN
    for st in range(NS):
        buf = st & 1
        mf = []
        for nt in range(NN):
            for mt in range(2):
                d_ = vACC + (nt*2+mt)*4
                mf.append(f"{MF} {v(d_,4)}, {v(vA[buf] + nt*4, 4)}, {bfrag(st, mt)}, {'0' if st == 0 else v(d_,4)}")
        sal = [[] for _ in range(NG)]; mem = [[] for _ in range(NG)]
        b = barrier_at(st)
        if b is not None:
            if b: sal[0].append(tr.wait(vm=b))
            sal[0].append("s_barrier")
        if st + 1 < NS:
            for r, x in enumerate(aread(st + 1)): mem[r].append((x, ("A", st + 1, r)))
        for g in range(3, NG - 1, 4):
            sal[g].append(tr.wait(lg=[("A", st, min(NG - 1, g + 4))]))
        if st + 1 < NS:
            sal[NG-1].append(tr.wait(vm=bwait(st + 1), lg=[("A", st + 1, 3)]))
        ex = extra_mem(st)
        pos = [1 + (k * (NG - 1)) // len(ex) + (1 if len(ex) <= (NG - 1) // 2 else 0) for k in range(len(ex))]
        for k, (sl, ins, tag) in enumerate(ex):
            g = pos[k]
            if k and pos[k-1] >= g - 1:
                mem[g] += sl + (["s_nop 0"] if sl and "m0" in sl[-1] else [])
            elif len(sl) == 2 and g >= 3 and not (k and pos[k-1] >= g - 2):
                sal[g-2].append(sl[0]); sal[g-1].append(sl[1])
            else:
                sal[g-1] += sl
            mem[g].append((ins, tag))
        val = [[] for _ in range(NG)]
        if valu:
            free = [g for g in range(NG) if g not in pos]
            for k, x in enumerate(valu(st)): val[free[k % len(free)] if k < len(free) else free[-1]].append(x)
        for g in range(NG):
            tr.emit(mf[g])
            for x in sal[g] + mem[g] + val[g]: tr.emit(x)

def RQ(lst):
    out = []; cur = []
    for sal, ins, tag in lst:
        if sal: cur = [x for x in sal if not x.startswith("s_cmp")][-2:] if not any(x.startswith("s_cselect") for x in sal) else [sal[-1]]
        out.append((sal, req(ins, cur), tag))
    return out

def wo_dma(T):
    return RQ([([f"s_add_u32 s{34+n}, s39, {(64*T + 16*n)*1024 - n*1024}", f"s_add_u32 m0, s43, {(T & 7)*SLOT}"],
             f"buffer_load_dwordx4 v18, {s(sWO,4)}, s{34+n} offen offset:{n*1024} lds", ("W", T)) for n in range(4)])

def attn_side_setup(p):
    p("v_lshrrev_b32 v28, 4, v1")
    p(f"s_lshl_b32 s42, s{sWave}, 2")
    p("v_add_u32 v28, s42, v28")
    p("v_and_b32 v29, 0xf0, v17")
    p("v_lshl_add_u32 v18, v28, 10, v29")
    p("s_bfe_u32 s39, s2, 0x20001")
    p("s_lshl_b32 s39, s39, 20")
    p("s_bfe_u32 s42, s2, 0x20003")
    p("s_lshl_b32 s42, s42, 8")
    p("s_add_u32 s39, s39, s42")

def gen_tail(p):
    tr = Track(p)
    WB = OPT.get("WB", 4)
    SC = lambda: "" if OPT.get("plainH") else " sc1"
    LDS_S = 9*SLOT
    srd(p, sFL, 46, 4*256*128, WS_FLAG)
    p("v_mov_b32 v6, 1")
    p("s_lshl_b32 s30, s2, 7")
    p(f"v_mov_b32 v{vFLAG}, s30")
    vA = [32, 64]; vACC = 128
    vFO, vXO, vCO, vLW, vLR, vPOLL2, vPOLL3 = 96, 97, 98, 99, 100, 101, 102
    X0, G0, SBr, CBr = 104, 112, 192, 208
    A_x = list(range(224, 230))
    vD4 = [232, 233, 234, 235]; A4 = [[236+4*b_+d for d in range(4)] for b_ in range(3)]
    vPFo = 248
    def aread1(st):
        T, u = st >> 1, st & 1
        regs8 = A_lo if (T & 7) < 4 else A_hi
        return [f"ds_read_b64_tr_b16 {v(vA[st & 1] + nt*4 + hh*2, 2)}, v{regs8[nt]} offset:{(T & 3)*SLOT + (2*u + hh)*1024}" for nt in range(8) for hh in range(2)]
    def win1(p):
        p("v_and_b32 v2, 7, v1")
        p("s_and_b32 s30, s2, 0xc7")
        p("v_lshl_or_b32 v2, v2, 3, s30")
        p(f"v_lshlrev_b32 v{vPOLL}, 7, v2")
        for d in range(8): p(f"v_subrev_u32 v{A_lo[d]}, 65536, v{A_hi[d]}")
        for r, x in enumerate(aread1(0)): tr.emit((x, ("A", 0, r)))
        p("s_and_b32 s30, s2, 1")
        p("s_lshl_b32 s30, s30, 3")
        p("s_lshr_b32 s31, s2, 5")
        p("s_add_u32 s30, s30, s31")
        p("s_lshl_b32 s30, s30, 3")
        p(f"s_lshl_b32 s31, s{sWave}, 1")
        p("s_add_u32 s40, s30, s31")
        p("s_bfe_u32 s41, s2, 0x20001")
        p("s_lshl_b32 s30, s40, 17")
        p("s_lshl_b32 s31, s41, 15")
        p("s_add_u32 s30, s30, s31")
        p(f"s_add_u32 s30, s30, {WS_O}")
        srd(p, sB, 46, 131072 + 32768, "s30")
        p("s_lshl_b32 s30, s41, 21")
        p("s_lshl_b32 s31, s40, 14")
        p("s_add_u32 s30, s30, s31")
        p("s_bfe_u32 s31, s2, 0x20003")
        p("s_lshl_b32 s31, s31, 12")
        p("s_add_u32 s30, s30, s31")
        p(f"s_add_u32 s30, s30, {WS_PART}")
        srd(p, sOUT, 46, 16384 + 4096, "s30")
        srd(p, sM1, 48, 2048*512*2)
        srd(p, sM2, 46, 3072*4, WS_MOD)
        p("s_and_b32 s30, s2, 7")
        p("s_lshl_b32 s30, s30, 4")
        p("s_lshr_b32 s31, s2, 4")
        p("s_add_u32 s30, s30, s31")
        p("s_bfe_u32 s31, s2, 0x10003")
        p("s_lshl_b32 s30, s30, 14")
        p("s_lshl_b32 s40, s31, 7")
        p("s_add_u32 s40, s40, s30")
        p("s_lshl_b32 s41, s31, 13")
        p("s_add_u32 s41, s41, s30")
        p("s_and_b32 s30, s2, 7")
        p("s_lshl_b32 s30, s30, 1")
        p("s_lshr_b32 s31, s2, 7")
        p("s_add_u32 s42, s30, s31")
        p("s_bfe_u32 s38, s2, 0x40003")
        p("s_mul_i32 s29, s38, 192")
        p("s_lshr_b32 s28, s2, 3")
        p("s_lshl_b32 s28, s28, 16")
        p(f"s_lshl_b32 s27, s{sWave}, 15")
        p("s_bfe_u32 s30, s2, 0x30003")
        p("s_lshl_b32 s30, s30, 7")
        p("s_add_u32 s27, s27, s30")
        p(";@WALK 1 123")
    geo = []
    G = geo.append
    G("v_lshlrev_b32 v2, 7, v1")
    G(f"v_lshl_add_u32 v{vPFo}, s43, 2, v2")
    G("v_lshrrev_b32 v2, 4, v0")
    G("v_mul_u32_u24 v2, 2752, v2")
    G("v_and_b32 v3, 0xf0, v17")
    G("v_add_u32 v2, v2, v3")
    G("v_mov_b32 v28, 0x40000000")
    G("v_mov_b32 v29, 0xc0")
    G("v_cmp_le_u32 s[32:33], v29, v3")
    G("v_and_b32 v30, 7, v1")
    G("v_bfe_u32 v31, v1, 3, 2")
    G("v_cndmask_b32 v17, v2, v28, s[32:33]")
    for d in range(6): G(f"v_add_u32 v{A_x[d]}, 65536, v{A_hi[d]}")
    G("v_lshrrev_b32 v28, 5, v1")
    G("v_lshrrev_b32 v29, 6, v0")
    G(f"v_lshlrev_b32 v{vFO}, 10, v28")
    G(f"v_lshl_add_u32 v{vFO}, v31, 8, v{vFO}")
    G(f"v_lshl_add_u32 v{vFO}, v30, 4, v{vFO}")
    G(f"v_add_u32 v{vFO}, s43, v{vFO}")
    G(f"v_lshlrev_b32 v{vXO}, 10, v30")
    G(f"v_lshl_add_u32 v{vXO}, v28, 6, v{vXO}")
    G(f"v_lshl_add_u32 v{vXO}, v31, 3, v{vXO}")
    G(f"v_lshl_add_u32 v{vXO}, v29, 8, v{vXO}")
    G(f"v_lshlrev_b32 v{vCO}, 7, v28")
    G(f"v_lshl_add_u32 v{vCO}, v31, 4, v{vCO}")
    G(f"v_lshl_add_u32 v{vCO}, v29, 9, v{vCO}")
    G(f"v_lshlrev_b32 v{vLR}, 4, v30")
    G(f"v_add_u32 v{vLR}, {LDS_S}, v{vLR}")
    G(f"v_lshl_add_u32 v{vLW}, v29, 2, v{vLR}")
    G("v_bfe_u32 v2, v1, 2, 2")
    G("v_and_b32 v3, 3, v1")
    G("v_lshlrev_b32 v2, 1, v2")
    G("v_lshl_add_u32 v2, v3, 3, v2")
    G("v_lshrrev_b32 v3, 3, s42")
    G("v_add_u32 v2, v2, v3")
    G("v_and_b32 v3, 7, s42".replace("7, s42", "s42, 7").replace("v_and_b32 v3, s42, 7", "v_and_b32_e64 v3, s42, 7"))
    G("v_lshl_add_u32 v2, v3, 5, v2")
    G(f"v_lshlrev_b32 v{vPOLL2}, 7, v2")
    G("v_and_b32 v2, 15, v1")
    G("v_mov_b32 v3, 0x87")
    G("v_and_b32 v3, s2, v3")
    G("v_lshl_or_b32 v2, v2, 3, v3")
    G(f"v_lshlrev_b32 v{vPOLL3}, 7, v2")
    G("v_lshrrev_b32 v2, 4, v1")
    G("v_lshlrev_b32 v2, 1, v2")
    G("v_and_b32 v3, 7, v1")
    G("v_xor_b32 v2, v2, v3")
    G("v_lshrrev_b32 v3, 3, v1")
    G("v_lshlrev_b32 v3, 10, v3")
    G(f"v_lshl_add_u32 v{vD4[0]}, v2, 4, v3")
    for n in range(1, 4): G(f"v_add_u32 v{vD4[n]}, {n*(8192-1024)}, v{vD4[0]}")
    G("v_lshrrev_b32 v3, 2, v1")
    G("v_bfe_u32 v2, v3, 1, 2")
    G("v_lshlrev_b32 v3, 7, v3")
    G("v_lshl_add_u32 v3, v2, 5, v3")
    G("v_and_b32 v2, 3, v1")
    G("v_lshl_add_u32 v3, v2, 3, v3")
    G(f"v_add_u32 v{A4[0][0]}, s43, v3")
    for d in range(1, 4): G(f"v_xor_b32 v{A4[0][d]}, {d<<5}, v{A4[0][0]}")
    for b_ in (1, 2):
        for d in range(4): G(f"v_add_u32 v{A4[b_][d]}, {b_*65536}, v{A4[0][d]}")
    G("v_and_b32 v16, 48, v1")
    geo = [x.replace("v_lshrrev_b32 v3, 3, s42", "v_lshrrev_b32_e64 v3, 3, s42") for x in geo]

    sync(p, 1, 0, win1, vPOLL, st_pub=7, st_done=8, pre_barrier=False)
    p(";@ZONE 1")
    def bl1(st):
        return RQ([([f"s_mov_b32 s{44+mt}, {mt*131072 + st*1024}"],
                 f"buffer_load_dwordx4 {a((st*2+mt)*4, 4)}, v{vB}, {s(sB,4)}, s{44+mt} offen" + ("" if OPT.get("plainO") else " sc1") + (" nt" if OPT.get("Ont") else ""), ("B", st)) for mt in range(2)])
    slot3 = lambda T: 8 if T == 0 else T - 1
    def w1_dma(T):
        return RQ([([f"s_add_u32 s{34+n}, s29, {(64*T + 16*n)*2752 - n*1024}", f"s_add_u32 m0, s43, {slot3(T)*SLOT}"],
                 f"buffer_load_dwordx4 v17, {s(sW1,4)}, s{34+n} offen offset:{n*1024} lds", ("W1", T)) for n in range(4)])
    NB = 2*WB
    NW1 = OPT.get("NW1", 6)
    for st in range(NB): tr.loads(bl1(st))
    tr.emit(tr.wait(vm=[("B", 0)], lg=[("A", 0, 3)]))
    stamp(p, "p1a")
    pre2 = []
    for i in range(2):
        for jh in range(2):
            pre2.append(([], f"buffer_load_dwordx2 {v(X0 + i*4 + jh*2, 2)}, v{vXO}, {s(sM1,4)}, s41 offen offset:{i*128 + jh*32}", "pre2"))
    for base, ch in ((G0, 2), (SBr, 3), (CBr, 4)):
        for i in range(2):
            for jh in range(2):
                pre2 += RQ([([f"s_mov_b32 s30, {ch*2048}"], f"buffer_load_dwordx4 {v(base + i*8 + jh*4, 4)}, v{vCO}, {s(sM2,4)}, s30 offen offset:{i*256 + jh*64}", "pre2")])
    def ex1(st):
        out = bl1(st + NB) if st + NB < 32 else []
        T1 = (st - 1) >> 1
        d = []
        if st in (1, 2): d = wo_dma(7)
        elif st >= 3 and T1 - 1 < 8: d = wo_dma(T1 - 1 + 8)
        elif st >= 3 and T1 - 1 - 8 + 1 <= NW1 and st < 31: d = w1_dma(T1 - 1 - 8 + 1)
        if d: out = interleave(out, d[0:2] if (st & 1) else d[2:4])
        if OPT.get("w10", 1) and st in (17, 18): out += w1_dma(0)[2*(st-17):2*(st-17)+2]
        k0 = st - 24
        if 0 <= k0: out += pre2[k0*2:(k0+1)*2]
        return out
    gemm_steps(tr, 32, 8, aread1, lambda st, mt: a((st*2+mt)*4, 4), vA, vACC, ex1,
               lambda st: ([("W", (st >> 1) + 1)] if (st & 1) else None), lambda st: [("B", st)],
               valu=lambda st: geo[st*11:(st+1)*11])
    assert len(geo) <= 8*11
    stamp(p, 9)
    p("s_nop 4")
    k = 0
    for s_ in range(4):
        for mt in range(2):
            p(f"s_mov_b32 s44, {mt*16384}")
            o = 32 + k*4; k += 1
            for t in range(2):
                src = vACC + ((2*s_+t)*2+mt)*4
                p(f"v_cvt_pk_bf16_f32 v{o+2*t}, v{src}, v{src+1}")
                p(f"v_cvt_pk_bf16_f32 v{o+2*t+1}, v{src+2}, v{src+3}")
            tr.emit(f"buffer_store_dwordx4 {v(o,4)}, v{vB}, {s(sOUT,4)}, s44 offen offset:{s_*1024} sc1")
    slot4 = lambda i: (7, 9, 8, 0, 1, 2, 3, 4, 5, 6, 7)[i]
    def w2_dma(i):
        return RQ([([f"s_add_u32 s34, s27, {i*4*32*1024}", f"s_add_u32 m0, s43, {slot4(i)*SLOT}"],
                 f"buffer_load_dwordx4 v{vD4[n]}, {s(sW2,4)}, s34 offen offset:{n*1024} lds", ("W2", i)) for n in range(4)])
    def win2(p):
        srd(p, sB, 46, 4*2048*512*2, WS_PART)
        srd(p, sOUT, 46, 2048*512*2, WS_H2)
        srd(p, sM1, 46, 2048*512*2, WS_X1)
        for kq in range(1, 4): p(f"s_add_u32 s{33+kq}, s40, {kq << 21}")
    tr.vm = []; tr.lg = []
    sync(p, 2, 1, win2, vPOLL2, st_pub=10, st_done=11)
    PP = 32
    for kq in range(4):
        for i in range(2):
            tr.emit((f"buffer_load_dwordx4 {v(PP + kq*8 + i*4, 4)}, v{vFO}, {s(sB,4)}, s{33+kq if kq else 40} offen offset:{i*2048} sc1", ("P", kq)))
    w1q = []
    for T in ([] if OPT.get("w10", 1) else [0]) + list(range(NW1 + 1, 8)): w1q += w1_dma(T)
    n0 = min(len(w1q), OPT.get("W1N0", 16))
    tr.loads(w1q[:n0]); w1q = w1q[n0:]
    def drip(n=1):
        nonlocal w1q
        tr.loads(w1q[:n]); w1q = w1q[n:]
    if OPT.get("w2t", 1):
        p("s_add_u32 s31, s28, 8192")
        tr.emit(f"buffer_load_dword v249, v{vPFo}, {s(sW2,4)}, s28 offen")
        tr.emit(f"buffer_load_dword v250, v{vPFo}, {s(sW2,4)}, s31 offen")
    F = 64; T_ = 80; XF = 128
    for j in range(8):
        p(f"v_lshlrev_b32 v{XF+2*j}, 16, v{X0+j}")
        p(f"v_and_b32 v{XF+2*j+1}, 0xffff0000, v{X0+j}")
    tr.emit(tr.wait(vm=[("P", 0)]))
    stamp(p, "p2a")
    for j in range(8):
        p(f"v_lshlrev_b32 v{F+2*j}, 16, v{PP+j}")
        p(f"v_and_b32 v{F+2*j+1}, 0xffff0000, v{PP+j}")
    for kq in (1, 2, 3):
        tr.emit(tr.wait(vm=[("P", kq)]))
        for j in range(8):
            p(f"v_lshlrev_b32 v{T_+2*(j&1)}, 16, v{PP+8*kq+j}")
            p(f"v_and_b32 v{T_+1+2*(j&1)}, 0xffff0000, v{PP+8*kq+j}")
            p(f"v_add_f32 v{F+2*j}, v{F+2*j}, v{T_+2*(j&1)}")
            p(f"v_add_f32 v{F+2*j+1}, v{F+2*j+1}, v{T_+1+2*(j&1)}")
            if j & 1: drip()
    for i in range(16): p(f"v_fma_f32 v{F+i}, v{F+i}, v{G0+i}, v{XF+i}")
    drip(2)
    for j in range(8): p(f"v_cvt_pk_bf16_f32 v{X0+j}, v{F+2*j}, v{F+2*j+1}")
    for j in range(8):
        p(f"v_lshlrev_b32 v{F+2*j}, 16, v{X0+j}")
        p(f"v_and_b32 v{F+2*j+1}, 0xffff0000, v{X0+j}")
    for i in range(2):
        tr.emit(f"buffer_store_dwordx4 {v(X0+4*i, 4)}, v{vFO}, {s(sM1,4)}, s40 offen offset:{2048*i}" + SC())
    drip(99)
    stamp(p, "p2b")
    ln_stats(p, F, 16, 32, vLW, vLR, 0, 84, 85, reduce=row_reduce8)
    stamp(p, "p2c")
    for i in range(16): p(f"v_sub_f32 v{F+i}, v{F+i}, v84")
    for i in range(16): p(f"v_mul_f32 v{F+i}, v{F+i}, v85")
    for i in range(16): p(f"v_fma_f32 v{F+i}, v{F+i}, v{CBr+i}, v{SBr+i}")
    for j in range(8): p(f"v_cvt_pk_bf16_f32 v{88+j}, v{F+2*j}, v{F+2*j+1}")
    for i in range(2):
        tr.emit(f"buffer_store_dwordx4 {v(88+4*i, 4)}, v{vFO}, {s(sOUT,4)}, s40 offen offset:{2048*i}" + SC())
    def aread3(st):
        T, u = st >> 1, st & 1
        sl = slot3(T)
        regs8 = A_x if sl == 8 else A_lo if sl < 4 else A_hi
        return [f"ds_read_b64_tr_b16 {v(vA[st & 1] + nt*4 + hh*2, 2)}, v{regs8[nt]} offset:{(sl & 3)*SLOT + (2*u + hh)*1024}" for nt in range(6) for hh in range(2)]
    def win3(p):
        for r, x in enumerate(aread3(0)): tr.emit((x, ("A", 0, r)))
        p("s_lshl_b32 s30, s42, 3")
        p(f"s_lshl_b32 s31, s{sWave}, 1")
        p("s_add_u32 s40, s30, s31")
        p("s_lshl_b32 s30, s40, 14")
        p(f"s_add_u32 s30, s30, {WS_H2}")
        srd(p, sB, 46, 32768, "s30")
        p(f"s_mul_i32 s30, s40, {43*1024}")
        p("s_mul_i32 s31, s38, 3072")
        p("s_add_u32 s30, s30, s31")
        p(f"s_add_u32 s30, s30, {WS_U}")
        srd(p, sOUT, 46, 43*1024 + 3072, "s30")
        p("s_cmp_eq_u32 s38, 14")
        p("s_cselect_b32 s29, 1, 3")
        p("s_cmp_eq_u32 s38, 15")
        p("s_cselect_b32 s29, 0, s29")
        p("s_lshl_b32 s30, s42, 1")
        p("s_bfe_u32 s31, s2, 0x10006")
        p("s_add_u32 s39, s30, s31")
        p("s_lshl_b32 s40, s39, 2")
        p(f"s_add_u32 s40, s40, s{sWave}")
        p("s_lshl_b32 s40, s40, 14")
        p("s_bfe_u32 s41, s2, 0x30003")
        p("s_lshl_b32 s28, s41, 11")
        p("s_add_u32 s28, s28, s40")
        p("s_lshl_b32 s26, s41, 8")
        p(f"s_add_u32 s26, s26, {5*2048}")
    tr.vm = []; tr.lg = []
    sync(p, 3, 2, win3, vPOLL3, st_done=12)
    X1r, GBr = 192, 200
    def bl3(st):
        return RQ([([f"s_mov_b32 s{36+mt}, {mt*16384 + st*1024}"],
                 f"buffer_load_dwordx4 {a((st*2+mt)*4, 4)}, v{vB}, {s(sB,4)}, s{36+mt} offen" + SC(), ("B", st)) for mt in range(2)])
    NB3 = OPT.get("NB3", 6)
    for st in range(NB3): tr.loads(bl3(st))
    tr.emit(tr.wait(vm=[("B", 0)], lg=[("A", 0, 3)]))
    stamp(p, "p3a")
    late3 = w2_dma(2) + w2_dma(3) + w2_dma(4) + w2_dma(5)
    def ex3(st):
        out = []
        for b_ in range(NB3 + (st*3)//2, min(16, NB3 + ((st+1)*3)//2)): out += bl3(b_)
        if 4 <= st < 8:
            out += (w2_dma(0) + w2_dma(1))[(st-4)*2:(st-4)*2+2]
        if st >= 8:
            lo = ((st - 8) * len(late3)) // 8; hi = ((st - 7) * len(late3)) // 8
            out += late3[lo:hi]
        return out
    gemm_steps(tr, 16, 6, aread3, lambda st, mt: a((st*2+mt)*4, 4), vA, vACC, ex3,
               lambda st: ([] if st == 8 else None), lambda st: [("B", st)])
    p("s_barrier")
    stamp(p, 13)
    epi = [([], f"buffer_load_dwordx4 {v(X1r,4)}, v{vB}, {s(sM1,4)}, s28 offen" + SC(), "epi"),
           ([], f"buffer_load_dwordx4 {v(X1r+4,4)}, v{vB}, {s(sM1,4)}, s28 offen offset:1024" + SC(), "epi")]
    epi += [([], f"buffer_load_dwordx4 {v(GBr+nt*4,4)}, v16, {s(sM2,4)}, s26 offen offset:{nt*64}", "epi") for nt in range(4)]
    epi = w2_dma(6) + w2_dma(7) + w2_dma(8) + w2_dma(9) + epi
    vA4 = [32, 48]; vACC4 = 64
    def aread4(i):
        sl = slot4(i)
        return [f"ds_read_b64_tr_b16 {v(vA4[i & 1] + nt*4 + hh*2, 2)}, v{A4[sl >> 2][nt]} offset:{(sl & 3)*SLOT + hh*2048}" for nt in range(4) for hh in range(2)]
    tr.loads(epi[:4]); epi = epi[4:]
    k = 0
    for s_ in range(3):
        for mt in range(2):
            src = [vACC + ((2*s_+t)*2+mt)*4 + r for t in range(2) for r in range(4)]
            t_ = 104 + (k & 1)*8; o = 76 + (k & 3)*4; k += 1
            for i in range(8): p(f"v_mul_f32 v{t_+i}, {hexf(-LOG2E)}, v{src[i]}")
            tr.loads(epi[:2]); epi = epi[2:]
            for i in range(8): p(f"v_exp_f32 v{t_+i}, v{t_+i}")
            tr.loads(epi[:1]); epi = epi[1:]
            for i in range(8): p(f"v_add_f32 v{t_+i}, 1.0, v{t_+i}")
            for i in range(8): p(f"v_rcp_f32 v{t_+i}, v{t_+i}")
            tr.loads(epi[:1]); epi = epi[1:]
            p(f"s_cmp_gt_u32 s29, {s_}")
            p(f"s_cselect_b32 s44, {mt*43*1024}, 2.0")
            for i in range(8): p(f"v_mul_f32 v{t_+i}, v{t_+i}, v{src[i]}")
            for i in range(4): p(f"v_cvt_pk_bf16_f32 v{o+i}, v{t_+2*i}, v{t_+2*i+1}")
            tr.emit(f"buffer_store_dwordx4 {v(o,4)}, v{vB}, {s(sOUT,4)}, s44 offen offset:{s_*1024}" + SC())
    assert not epi
    def win4(p):
        for r, x in enumerate(aread4(0)): tr.emit((x, ("A", 0, r)))
        p(f"s_mul_i32 s30, s39, {4*43*1024}")
        p(f"s_add_u32 s30, s30, {WS_U}")
        srd(p, sB, 46, 4*43*1024, "s30")
        srd(p, sOUT, 50, 2048*512*2)
        p(f"s_lshl_b32 s39, s{sWave}, 10")
        p("s_lshl_b32 s30, s41, 7")
        p("s_add_u32 s40, s40, s30")
    tr.vm = []; tr.lg = []
    sync(p, 4, 3, win4, vPOLL3, st_done=14)
    NS = 11
    def bl4(i):
        out = []
        for mt in range(4):
            sal = [f"s_add_u32 s{35+mt}, s39, {i*4096 + mt*43*1024}"]
            if i == NS - 1:
                sal += [f"s_cmp_eq_u32 s{sWave}, 3", f"s_cselect_b32 s{35+mt}, 0x40000000, s{35+mt}"]
            out.append((sal, f"buffer_load_dwordx4 {a((i*4+mt)*4, 4)}, v{vB}, {s(sB,4)}, s{35+mt} offen" + SC(), ("B", i)))
        return RQ(out)
    W4 = OPT.get("W4", 3)
    for i in range(W4): tr.loads(bl4(i))
    tr.emit(tr.wait(vm=[("B", 0)], lg=[("A", 0, 7)]))
    stamp(p, "p4a")
    for i in range(NS):
        mf = []
        for nt in range(4):
            for mt in range(4):
                d_ = vACC4 + (mt*4+nt)*4
                mf.append(f"{MF} {v(d_,4)}, {v(vA4[i & 1] + nt*4, 4)}, {a((i*4+mt)*4, 4)}, {'0' if i == 0 else v(d_,4)}")
        sal = [[] for _ in range(16)]; mem = [[] for _ in range(16)]
        if i + 1 < NS:
            for r, x in enumerate(aread4(i + 1)): mem[(0, 1, 2, 4, 5, 6, 8, 9)[r]].append((x, ("A", i + 1, r)))
            sal[15].append(tr.wait(vm=[("B", i + 1), ("W2", i + 2)], lg=[("A", i + 1, 7)]))
        ld = bl4(i + W4) if i + W4 < NS else []
        for k_, (sl, ins, tag) in enumerate(ld):
            g = 3 + 4*k_
            sal[g-1] += sl
            mem[g].append((ins, tag))
        if i < 4:
            sl, ins, tag = w2_dma(10)[i]
            sal[12] += sl; mem[13].append((ins, tag))
        for g in range(16):
            tr.emit(mf[g])
            for x in sal[g] + mem[g]: tr.emit(x)
    stamp(p, "p4b")
    p("s_barrier")
    p(f"s_lshl_b32 s30, s{sWave}, 14")
    p(f"v_add_u32 v2, s30, v{vB}")
    p(f"v_add_u32 v3, s43, v{vB}")
    p("s_nop 3")
    for t in range(16): p(f"ds_write_b128 v2, {v(vACC4 + t*4, 4)} offset:{t*1024}")
    XF = 128
    for j in range(8):
        p(f"v_lshlrev_b32 v{XF+2*j}, 16, v{X1r+j}")
        p(f"v_and_b32 v{XF+2*j+1}, 0xffff0000, v{X1r+j}")
    p("s_waitcnt lgkmcnt(0)")
    p("s_barrier")
    for src in range(4):
        for nt in range(4):
            p(f"ds_read_b128 {v(vACC4 + (src*4+nt)*4, 4)}, v3 offset:{src*16384 + nt*1024}")
    p("v_and_b32 v2, 15, v1")
    p("v_lshlrev_b32 v2, 10, v2")
    p("v_add_u32 v2, v2, v16")
    stamp(p, "p4c")
    p("s_waitcnt lgkmcnt(8)")
    for i in range(16): p(f"v_add_f32 v{vACC4+i}, v{vACC4+i}, v{vACC4+16+i}")
    p("s_waitcnt lgkmcnt(0)")
    for i in range(16): p(f"v_add_f32 v{vACC4+32+i}, v{vACC4+32+i}, v{vACC4+48+i}")
    for i in range(16): p(f"v_add_f32 v{vACC4+i}, v{vACC4+i}, v{vACC4+32+i}")
    for i in range(16): p(f"v_fma_f32 v{vACC4+i}, v{vACC4+i}, v{GBr+i}, v{XF+i}")
    for j in range(8): p(f"v_cvt_pk_bf16_f32 v{40+j}, v{vACC4+2*j}, v{vACC4+2*j+1}")
    p("s_nop 1")
    for sw in ("v_permlane32_swap_b32", "v_permlane16_swap_b32"):
        for s_ in range(2):
            p(f"{sw} v{40+4*s_}, v{42+4*s_}")
            p(f"{sw} v{41+4*s_}, v{43+4*s_}")
    for s_ in range(2):
        p(f"buffer_store_dwordx4 {v(40+4*s_,4)}, v2, {s(sOUT,4)}, s40 offen offset:{s_*64}" + OPT.get("outmod", "").replace("_", " "))
```

```python
from common import *

def bf16_round(p, dst, src):
    p(f"v_cvt_pk_bf16_f32 v{dst}, v{src}, v{src}")
    p(f"v_and_b32 v{dst}, 0xffff0000, v{dst}")

def ln_stats(p, xr, n, t0, ldsaddr_w, ldsaddr_r, ldsoff, out_mean, out_rden, reduce=None):
    from k_pre import bf16_round
    acc = [t0, t0+1, t0+2, t0+3]
    for k in range(4): p(f"v_add_f32 v{acc[k]}, v{xr+k}, v{xr+4+k}")
    for i in range(8, n): p(f"v_add_f32 v{acc[i%4]}, v{acc[i%4]}, v{xr+i}")
    p(f"v_add_f32 v{t0}, v{t0}, v{t0+1}")
    p(f"v_add_f32 v{t0+2}, v{t0+2}, v{t0+3}")
    p(f"v_add_f32 v{t0}, v{t0}, v{t0+2}")
    (reduce(p, t0, t0+1) if reduce else xlane_reduce(p, "v_add_f32", [t0], [t0+1]))
    p(f"ds_write_b32 v{ldsaddr_w}, v{t0} offset:{ldsoff}")
    p("s_waitcnt lgkmcnt(0)")
    p("s_barrier")
    p(f"ds_read_b128 v[{t0+4}:{t0+7}], v{ldsaddr_r} offset:{ldsoff}")
    p("s_waitcnt lgkmcnt(0)")
    p(f"v_add_f32 v{t0+4}, v{t0+4}, v{t0+5}")
    p(f"v_add_f32 v{t0+6}, v{t0+6}, v{t0+7}")
    p(f"v_add_f32 v{t0+4}, v{t0+4}, v{t0+6}")
    p(f"v_mul_f32 v{out_mean}, {hexf(1.0/512)}, v{t0+4}")
    for k in range(4): p(f"v_mov_b32 v{acc[k]}, 0")
    for i in range(n):
        tt = t0 + 4 + (i % 4)
        p(f"v_sub_f32 v{tt}, v{xr+i}, v{out_mean}")
        p(f"v_fmac_f32 v{acc[i%4]}, v{tt}, v{tt}")
    p(f"v_add_f32 v{t0}, v{t0}, v{t0+1}")
    p(f"v_add_f32 v{t0+2}, v{t0+2}, v{t0+3}")
    p(f"v_add_f32 v{t0}, v{t0}, v{t0+2}")
    (reduce(p, t0, t0+1) if reduce else xlane_reduce(p, "v_add_f32", [t0], [t0+1]))
    p(f"ds_write_b32 v{ldsaddr_w}, v{t0} offset:{ldsoff+256}")
    p("s_waitcnt lgkmcnt(0)")
    p("s_barrier")
    p(f"ds_read_b128 v[{t0+4}:{t0+7}], v{ldsaddr_r} offset:{ldsoff+256}")
    p("s_waitcnt lgkmcnt(0)")
    p(f"v_add_f32 v{t0+4}, v{t0+4}, v{t0+5}")
    p(f"v_add_f32 v{t0+6}, v{t0+6}, v{t0+7}")
    p(f"v_add_f32 v{t0+4}, v{t0+4}, v{t0+6}")
    p(f"v_mul_f32 v{t0+4}, {hexf(1.0/512)}, v{t0+4}")
    bf16_round(p, t0+4, t0+4)
    p(f"v_add_f32 v{t0+4}, {hexf(1e-5)}, v{t0+4}")
    bf16_round(p, t0+4, t0+4)
    p(f"v_sqrt_f32 v{t0+4}, v{t0+4}")
    p("s_nop 0")
    bf16_round(p, t0+4, t0+4)
    p(f"v_rcp_f32 v{out_rden}, v{t0+4}")
    bf16_round(p, out_mean, out_mean)


def gen_pre(p):
    L = "k_pre_kernel"
    header(p, L)
    p("s_cmp_ge_u32 s2, 256")
    p("s_cbranch_scc1 L_pre_end")
    stamp_begin(p)
    p(f"s_load_dwordx4 s[4:7], s[0:1], {KA_C}")
    p(f"s_load_dwordx2 s[8:9], s[0:1], {KA_WS}")
    p(f"s_load_dwordx8 s[36:43], s[0:1], {KA_X}")
    p("s_and_b32 s30, s2, 7")
    p("s_lshr_b32 s31, s2, 3")
    p("s_cmp_lt_u32 s31, 16")
    p("s_cbranch_scc1 L_pre_ln")
    p("s_cmp_ge_u32 s31, 28")
    p("s_cbranch_scc1 L_pre_pf")
    p("s_mul_i32 s29, s30, 12")
    p("s_add_u32 s29, s29, s31")
    p("s_sub_u32 s29, s29, 16")
    p("v_lshrrev_b32 v1, 2, v0")
    p("v_and_b32 v2, 3, v0")
    p("v_mul_u32_u24 v3, 6144, v1")
    p("v_lshl_add_u32 v3, v2, 4, v3")
    p("v_lshlrev_b32 v4, 1, v1")
    p("s_lshl_b32 s24, s29, 6")
    p("s_waitcnt lgkmcnt(0)")
    srd(p, 16, 6, 512*3072*2)
    srd(p, 12, 4, 1024)
    for i in range(8):
        p(f"buffer_load_dwordx4 v[{16+4*i}:{19+4*i}], v3, s[16:19], s24 offen")
        if i < 7: p(f"s_add_u32 s24, s24, {64*6144}")
    for i in range(8):
        p(f"buffer_load_ushort v{8+i}, v4, s[12:15], 0 offen offset:{128*i}")
    srd(p, 20, 8, 3072*4, WS_MOD)
    for i in range(8): p(f"v_mov_b32 v{48+i}, 0")
    p("v_lshrrev_b32 v5, 4, v0")
    p("v_lshlrev_b32 v5, 7, v5")
    p("v_lshl_add_u32 v5, v2, 5, v5")
    p("v_and_b32 v6, 15, v0")
    p("s_waitcnt vmcnt(0)")
    for i in range(8): p(f"v_lshlrev_b32 v{8+i}, 16, v{8+i}")
    for i in range(8): p(f"v_mul_f32 v{56+i}, {hexf(-LOG2E)}, v{8+i}")
    for i in range(8): p(f"v_exp_f32 v{56+i}, v{56+i}")
    for i in range(8): p(f"v_add_f32 v{56+i}, 1.0, v{56+i}")
    for i in range(8): p(f"v_rcp_f32 v{56+i}, v{56+i}")
    for i in range(8): p(f"v_mul_f32 v{8+i}, v{8+i}, v{56+i}")
    for i in range(8): bf16_round(p, 8+i, 8+i)
    for i in range(8):
        for d in range(4):
            r = 16 + 4*i + d
            p(f"v_lshlrev_b32 v56, 16, v{r}")
            p(f"v_and_b32 v57, 0xffff0000, v{r}")
            p(f"v_fmac_f32 v{48+2*d}, v{8+i}, v56")
            p(f"v_fmac_f32 v{49+2*d}, v{8+i}, v57")
    p("v_cmp_gt_u32 s[26:27], 4, v6")
    p("s_nop 0")
    for rot in (4, 8):
        for i in range(8): p(f"v_add_f32_dpp v{48+i}, v{48+i}, v{48+i} row_ror:{rot} row_mask:0xf bank_mask:0xf")
    p("s_and_saveexec_b64 s[26:27], s[26:27]")
    p("ds_write_b128 v5, v[48:51]")
    p("ds_write_b128 v5, v[52:55] offset:16")
    p("s_mov_b64 exec, s[26:27]")
    p("v_cmp_gt_u32 s[26:27], 32, v0")
    p("v_lshlrev_b32 v5, 2, v0")
    cs = LOG2E / (128 ** 0.5)
    p("s_lshr_b32 s25, s29, 4")
    p("s_cmp_eq_u32 s25, 1")
    p("s_cselect_b32 s28, 1.0, 0")
    p("s_cmp_eq_u32 s25, 4")
    p("s_cselect_b32 s28, 1.0, s28")
    p("s_cmp_lt_u32 s25, 2")
    p(f"s_cselect_b32 s25, {hexf(cs)}, 1.0")
    p("s_lshl_b32 s24, s29, 7")
    p("s_waitcnt lgkmcnt(0)")
    p("s_barrier")
    p("s_and_saveexec_b64 s[26:27], s[26:27]")
    p("s_cbranch_execz L_pre_done")
    for i in range(16): p(f"ds_read_b32 v{16+i}, v5 offset:{128*i}")
    p("s_waitcnt lgkmcnt(0)")
    for st in (8, 4, 2, 1):
        for i in range(st): p(f"v_add_f32 v{16+i}, v{16+i}, v{16+i+st}")
    bf16_round(p, 16, 16)
    p("v_add_f32 v16, s28, v16")
    bf16_round(p, 16, 16)
    p("v_mul_f32 v16, s25, v16")
    p("buffer_store_dword v16, v5, s[20:23], s24 offen")
    p("s_branch L_pre_done")
    p("L_pre_pf:")
    p("v_lshrrev_b32 v1, 6, v0")
    p("s_sub_u32 s29, s31, 28")
    p("s_lshl_b32 s29, s29, 2")
    p("v_add_u32 v1, s29, v1")
    p("s_lshr_b32 s29, s30, 1")
    p("s_lshl_b32 s29, s29, 3")
    p("v_lshrrev_b32 v2, 1, v1")
    p("v_add_u32 v2, s29, v2")
    p("v_lshlrev_b32 v2, 19, v2")
    p("v_and_b32 v3, 63, v0")
    p("v_lshl_add_u32 v2, v3, 7, v2")
    p("v_and_b32 v1, 1, v1")
    p("v_lshl_add_u32 v3, v1, 14, v2")
    p("v_lshl_add_u32 v4, v1, 13, v2")
    p("s_waitcnt lgkmcnt(0)")
    srd(p, 12, 38, 32*524288)
    srd(p, 16, 40, 32*524288)
    p("s_mov_b32 s24, 8192")
    p("buffer_load_dword v8, v3, s[12:15], 0 offen")
    p("buffer_load_dword v9, v3, s[12:15], s24 offen")
    p("buffer_load_dword v10, v4, s[16:19], 0 offen")
    p("s_waitcnt vmcnt(0)")
    p("s_branch L_pre_done")
    p("L_pre_ln:")
    p("s_and_b32 s28, s30, 1")
    p("s_lshl_b32 s28, s28, 6")
    p("s_lshr_b32 s29, s30, 1")
    p("s_lshl_b32 s27, s29, 4")
    p("s_add_u32 s28, s28, s27")
    p("s_add_u32 s28, s28, s31")
    p("v_and_b32 v1, 15, v0")
    p("v_bfe_u32 v2, v0, 4, 2")
    p("v_lshrrev_b32 v3, 6, v0")
    p("v_lshlrev_b32 v4, 10, v1")
    p("v_lshl_add_u32 v4, v3, 8, v4")
    p("v_lshl_add_u32 v4, v2, 5, v4")
    p("s_lshl_b32 s24, s28, 14")
    p("s_waitcnt lgkmcnt(0)")
    srd(p, 12, 36, 2048*512*2)
    for f in range(4):
        p(f"buffer_load_dwordx4 v[{16+4*f}:{19+4*f}], v4, s[12:15], s24 offen offset:{(f>>1)*128 + (f&1)*16}")
    srd(p, 20, 8, 2048*512*2, WS_H)
    srd(p, 16, 42, 512*4096*2)
    p("v_and_b32 v6, 63, v0")
    p("s_lshl_b32 s27, s31, 2")
    p("v_add_u32 v12, s27, v3")
    p("v_lshlrev_b32 v12, 3, v12")
    p("v_add_u32 v12, v12, v2")
    p("v_lshlrev_b32 v12, 13, v12")
    p("v_lshl_add_u32 v12, v1, 7, v12")
    p("s_lshl_b32 s26, s29, 11")
    p("s_add_u32 s27, s26, 32768")
    p("v_lshlrev_b32 v6, 4, v6")
    p("v_lshl_add_u32 v6, v3, 12, v6")
    p("v_lshlrev_b32 v8, 4, v1")
    p("v_lshl_add_u32 v7, v3, 2, v8")
    p("s_waitcnt vmcnt(0)")
    p("buffer_load_dword v13, v12, s[16:19], s26 offen")
    p("buffer_load_dword v14, v12, s[16:19], s27 offen")
    for r in range(16):
        p(f"v_lshlrev_b32 v{32+2*r}, 16, v{16+r}")
        p(f"v_and_b32 v{33+2*r}, 0xffff0000, v{16+r}")
    ln_stats(p, 32, 32, 16, 7, 8, 0, 10, 11)
    for i in range(32):
        p(f"v_sub_f32 v{32+i}, v{32+i}, v10")
        p(f"v_mul_f32 v{32+i}, v{32+i}, v11")
    for r in range(16):
        p(f"v_cvt_pk_f16_f32 v{16+r}, v{32+2*r}, v{33+2*r}")
    for f in range(4):
        p(f"buffer_store_dwordx4 v[{16+4*f}:{19+4*f}], v6, s[20:23], s24 offen offset:{1024*f}")
    p("L_pre_done:")
    p("s_mov_b64 exec, -1")
    p("v_cmp_gt_u32 s[26:27], 4, v0")
    p("s_and_saveexec_b64 s[26:27], s[26:27]")
    p("s_cbranch_execz L_pre_noflag")
    srd(p, 44, 8, 4*256*128, WS_FLAG)
    p("v_lshlrev_b32 v60, 15, v0")
    p("v_mov_b32 v61, 0")
    p("s_lshl_b32 s24, s2, 7")
    p("buffer_store_dword v61, v60, s[44:47], s24 offen")
    p("L_pre_noflag:")
    stamp_end(p, 0)
    p("L_pre_end:")
    p("s_endpgm")
    return L, descriptor(L, 64, 48), "grid=(256,1,1) block=(256,1,1) lds=2048"
```

```python
import sys
from common import *
import k_pre, k_attn, k_tail

def build(opts={}):
    import common
    common.STAMPS = int(opts.get("stamps", 0))
    common.STAMP_SET = opts["set"].split(",") if "set" in opts else None
    common.OPT.clear(); common.OPT.update(opts)
    fused = opts.get("fused", 1)
    gens = [k_pre.gen_pre, lambda p: k_attn.gen_attn(p, mfmasum=opts.get("mfmasum", 1), fused=fused)]
    if not fused: gens += [k_tail.gen_oproj, k_tail.gen_ln2, k_tail.gen_ffn1, k_tail.gen_ffn2]
    launches, descs, bodies, errs = [], [], [], []
    for g in gens:
        p = Prog()
        L, d, geo = g(p)
        launches.append(f"; @launch kernel={L} {geo}")
        descs.append(d); bodies.append(p.text())
        errs += check(linearize(p.items, start=L), L)
        if L == "k_attn_kernel":
            errs += check(linearize(p.items, start=L, taken=("L_attn_tail",)), L + "/tail")
            errs += check(linearize(p.items, start=L, taken=("L_attn_tail", "L_attn_fallback",)), L + "/fb")
            if fused:
                errs += check(linearize(p.items, start=L, taken=("L_attn_tail", "L_sync1_a", "L_sync1_b", "L_sync2_a", "L_sync2_b", "L_sync3_a", "L_sync3_b", "L_sync4_a", "L_sync4_b")), L + "/w1")
        if L == "k_pre_kernel":
            errs += check(linearize(p.items, start=L, taken=("L_pre_ln",)), L + "/ln")
            errs += check(linearize(p.items, start=L, taken=("L_pre_pf",)), L + "/pf")
    ref = open(f"cdna_kernels/{NAME}.s.ref").read().split("\n")
    head = [l for l in ref if l.startswith("; Kernarg") or l.startswith(";   offset")]
    out = "\n".join(head + launches) + "\n"
    out += '.amdgcn_target "amdgcn-amd-amdhsa--gfx950"\n.text\n' + "".join(bodies)
    out += '.section .rodata,"a"\n' + "".join(descs)
    return out, errs

if __name__ == "__main__":
    opts = {}
    outp = f"cdna_kernels/{NAME}.s"
    for a_ in sys.argv[1:]:
        if a_.startswith("-o"): outp = a_[2:]
        else:
            k, _, val = a_.partition("=")
            opts[k] = (int(val) if val.lstrip('-').isdigit() else val) if val else True
    out, errs = build(opts)
    seen = set()
    for e in errs:
        if e not in seen:
            if len(seen) < 12: print(e)
            seen.add(e)
    open(outp, "w").write(out)
    print("wrote", outp, len(out), "bytes;", len(seen), "checker errors")
```

```python
from dsl import *
NAME = "adaLN_cond__gqa_block_cached__dense_activation_silu__prompt"
KA_X, KA_K, KA_V, KA_WQ, KA_WO, KA_BX, KA_W1, KA_W2, KA_C, KA_WMOD, KA_OUT, KA_DBG, KA_WS = [8*i for i in range(13)]
WS_MOD  = 0x0
WS_MODP = 0x8000
WS_H    = 0x100000
WS_O    = 0x400000
WS_PART = WS_O + (16 << 20)
WS_X1   = WS_PART + (8 << 20)
WS_H2   = WS_X1 + (2 << 20)
WS_U    = WS_H2 + (2 << 20)
WS_SCR_BYTES = (28 << 20) + 2048*1376*2
LOG2E = 1.4426950408889634
import struct
def f2u(x): return struct.unpack("<I", struct.pack("<f", x))[0]
def hexf(x): return "0x%08x" % f2u(x)

def header(p, label):
    p(".p2align 8")
    p(f".globl {label}")
    p(f".type {label},@function")
    p(f"{label}:")

def descriptor(label, vgpr, sgpr=96, accum=None):
    if STAMPS: sgpr = 102
    accum = accum if accum is not None else min(256, (vgpr + 3) // 4 * 4)
    return f""".p2align 6
.amdhsa_kernel {label}
  .amdhsa_next_free_vgpr {vgpr}
  .amdhsa_next_free_sgpr {sgpr}
  .amdhsa_accum_offset {accum}
  .amdhsa_group_segment_fixed_size 0
  .amdhsa_kernarg_size 104
  .amdhsa_user_sgpr_count 2
  .amdhsa_user_sgpr_kernarg_segment_ptr 1
  .amdhsa_system_sgpr_workgroup_id_x 1
.end_amdhsa_kernel
"""

def srd(p, d, base, nbytes, add_lo=None):
    if add_lo is None and d == base:
        pass
    elif add_lo is None:
        p(f"s_mov_b32 s{d}, s{base}")
        p(f"s_mov_b32 s{d+1}, s{base+1}")
    else:
        p(f"s_add_u32 s{d}, s{base}, {add_lo}")
        p(f"s_addc_u32 s{d+1}, s{base+1}, 0")
    p(f"s_mov_b32 s{d+2}, {nbytes}")
    p(f"s_mov_b32 s{d+3}, 0x20000")

def xlane_reduce(p, op, regs_, tmp):
    for sw in ("v_permlane32_swap_b32", "v_permlane16_swap_b32"):
        for r, t in zip(regs_, tmp): p(f"v_mov_b32 v{t}, v{r}")
        if len(regs_) < 3: p(f"s_nop {2 - len(regs_)}")
        k = 0
        for r, t in zip(regs_, tmp):
            if len(regs_) >= 3 or k == 0 or True:
                pass
            p(f"{sw} v{r}, v{t}")
            k += 1
        for r, t in zip(regs_, tmp): p(f"{op} v{r}, v{r}, v{t}")

STAMPS = 0
WS_STAMP = 0x3800000
WS_FLAG = 0x20000
STAMP_SET = None
SB = 70
def stamp(p, i):
    if STAMPS and STAMP_SET is not None and i not in (0, 15):
        if str(i) not in STAMP_SET: return
        i = 1 + STAMP_SET.index(str(i))
    elif isinstance(i, str): return
    if STAMPS:
        p(f"{'s_memrealtime' if STAMPS == 1 else 's_memtime'} s[{SB+2*i}:{SB+1+2*i}]")
def stamp_begin(p):
    if STAMPS:
        for i in range(SB, SB+32): p(f"s_mov_b32 s{i}, 0")
        stamp(p, 0)
def stamp_end(p, kidx, last=15, ws=46, tid=0):
    if STAMPS:
        p("s_waitcnt vmcnt(0)")
        stamp(p, last)
        p("s_waitcnt lgkmcnt(0)")
        p("s_mov_b64 exec, -1")
        p(f"v_mov_b32 v3, {tid}")
        p("v_cmp_eq_u32 s[32:33], v3, v0")
        p("s_and_saveexec_b64 s[32:33], s[32:33]")
        p(f"s_cbranch_execz L_stamp_skip{kidx}")
        p("s_lshl_b32 s30, s2, 6")
        p(f"s_add_u32 s30, s30, {WS_STAMP + kidx*65536}")
        p(f"s_add_u32 s34, s{ws}, s30")
        p(f"s_addc_u32 s35, s{ws+1}, 0")
        for i in range(16): p(f"v_mov_b32 v{4+i}, s{SB+2*i}")
        p("v_mov_b32 v2, 0")
        for i in range(4): p(f"global_store_dwordx4 v2, v[{4+4*i}:{7+4*i}], s[34:35] offset:{16*i}")
        p(f"L_stamp_skip{kidx}:")

def emit_gaps(p, mf, sal, mem, val):
    for g in range(len(mf)):
        p(mf[g])
        for x in sal[g] + mem[g] + val[g]: p(x)

def pack_gaps(NG, mems, valus, mem_lo=0, mem_hi=None, val_lo=0, val_hi=None):
    sal = [[] for _ in range(NG)]; mem = [[] for _ in range(NG)]; val = [[] for _ in range(NG)]
    cost = [0]*NG
    mem_hi = NG if mem_hi is None else mem_hi
    val_hi = NG if val_hi is None else val_hi
    for k, (sl, ins, c) in enumerate(mems):
        g = mem_lo + (k * (mem_hi - mem_lo)) // len(mems)
        if sl:
            if g == 0: sal[0] += sl + (["s_nop 0"] if any("m0" in x for x in sl) else [])
            else: sal[g-1] += sl
        mem[g].append(ins); cost[g] += c
    if valus:
        total = sum(cost[val_lo:val_hi]) + len(valus)
        n = val_hi - val_lo
        acc = 0; k = 0
        for g in range(val_lo, val_hi):
            target = (total * (g - val_lo + 1)) / n
            acc += cost[g]
            while k < len(valus) and (acc + 1 <= target + 1e-9 or g == val_hi - 1):
                val[g].append(valus[k]); k += 1; acc += 1
    return sal, mem, val

def interleave(a_, b_):
    if not b_: return list(a_)
    if not a_: return list(b_)
    out = []; n = len(a_) + len(b_); ia = ib = 0
    for i in range(n):
        if ib < len(b_) and (ia >= len(a_) or (ib + 0.5) * n / len(b_) <= i + 1):
            out.append(b_[ib]); ib += 1
        else:
            out.append(a_[ia]); ia += 1
    return out

OPT = {}
```

```python
from common import *

MF = "v_mfma_f32_16x16x32_bf16"
vKa = [4, 5, 6, 7]
vVa = [8, 9, 10, 11, 12, 13, 14, 15]
vDK, vDV, vDW, vH = 16, 17, 18, 19
vL = [20, 21, 22, 23]
vM = [24, 25, 26, 27]
vT = [28, 29, 30, 31]
vNEG = 32
vTMP = 48
vQ = 64
vS = 128
vP = 192
vONE = 224
vLS = 228
aO = 0
aK = 128
aV = 192
sK, sV, sW, sH, sO = 4, 8, 12, 16, 20
sWave, sM0K, sM0V, sOffKV, sCnt, sRetry, sT0 = 24, 25, 26, 27, 28, 29, 30
SLOT = 16384
LDS_K, LDS_V, LDS_X = 0, 65536, 131072
LDS_BYTES = 163840

def lane_consts(p, tid=0, lane=1, tmp=(2, 3, 28, 29, 30, 31), want_k=True):
    t0, t1, t2, t3, t4, t5 = tmp
    p(f"v_and_b32 v{lane}, 63, v{tid}")
    p(f"v_and_b32 v{t0}, 15, v{lane}")
    p(f"v_lshrrev_b32 v{t1}, 4, v{lane}")
    if want_k:
        p(f"v_lshrrev_b32 v{t2}, 2, v{t0}")
        p(f"v_lshlrev_b32 v{t2}, 12, v{t2}")
        p(f"v_and_b32 v{t3}, 3, v{t0}")
        p(f"v_lshl_add_u32 v{t2}, v{t3}, 8, v{t2}")
        p(f"v_xor_b32 v{t3}, v{t1}, v{t0}")
        p(f"v_lshl_add_u32 v{vKa[0]}, v{t3}, 4, v{t2}")
        for s_ in range(1, 4): p(f"v_xor_b32 v{vKa[s_]}, {s_<<6}, v{vKa[0]}")
    p(f"v_lshrrev_b32 v{t2}, 2, v{t0}")
    p(f"v_lshl_add_u32 v{t3}, v{t1}, 4, v{t2}")
    p(f"v_lshlrev_b32 v{t3}, 8, v{t3}")
    p(f"v_and_b32 v{t4}, 1, v{t1}")
    p(f"v_lshl_add_u32 v{t2}, v{t4}, 2, v{t2}")
    p(f"v_lshl_add_u32 v{t3}, v{t2}, 5, v{t3}")
    p(f"v_and_b32 v{t4}, 3, v{t0}")
    p(f"v_lshl_add_u32 v{t3}, v{t4}, 3, v{t3}")
    p(f"v_add_u32 v{vVa[0]}, {LDS_V}, v{t3}")
    for d in range(1, 8): p(f"v_xor_b32 v{vVa[d]}, {d<<5}, v{vVa[0]}")

def kread(buf, unit_in_tile, slot):
    out = []
    for kt in range(2):
        for s_ in range(4):
            off = slot*SLOT + (2*unit_in_tile + kt)*1024
            out.append(f"ds_read_b128 {a(aK + buf*32 + (kt*4+s_)*4, 4)}, v{vKa[s_]} offset:{off}")
    return out

def vread(dst_file, dst_base, unit_in_tile, slot):
    out = []
    for dt in range(8):
        for hh in range(2):
            off = slot*SLOT + (2*unit_in_tile + hh)*1024
            out.append(f"ds_read_b64_tr_b16 {R(dst_file, dst_base + dt*4 + hh*2, 2)}, v{vVa[dt]} offset:{off}")
    return out

def qk_mfmas(sbuf, kbuf, czero=False):
    out = []
    for qt in range(4):
        for kt in range(2):
            d = vS + sbuf*32 + (qt*2+kt)*4
            for s_ in range(4):
                c = v(d, 4) if s_ else ("0" if czero else v(vNEG + qt*4, 4))
                out.append(f"{MF} {v(d,4)}, {a(aK + kbuf*32 + (kt*4+s_)*4, 4)}, {v(vQ + (qt*4+s_)*4, 4)}, {c}")
    return out

def pv_mfmas(pbuf, vbuf, mfmasum):
    out = []
    for dt in range(8):
        for qt in range(4):
            o = aO + (dt*4+qt)*4
            out.append(f"{MF} {a(o,4)}, {a(aV + vbuf*32 + dt*4, 4)}, {v(vP + pbuf*16 + qt*4, 4)}, {a(o,4)}")
    if mfmasum:
        for qt in range(4):
            out.append(f"{MF} {v(vLS+qt*4,4)}, {v(vONE,4)}, {v(vP + pbuf*16 + qt*4, 4)}, {v(vLS+qt*4,4)}")
    return out

def sm_ops(sbuf, pbuf, mfmasum):
    e, ad, c = [], [], []
    for i in range(32):
        r = vS + sbuf*32 + i
        e.append(f"v_exp_f32 v{r}, v{r}")
        if not mfmasum: ad.append(f"v_add_f32 v{vL[i//8]}, v{vL[i//8]}, v{r}")
    for j in range(16):
        r = vS + sbuf*32 + 2*j
        c.append(f"v_cvt_pk_bf16_f32 v{vP + pbuf*16 + j}, v{r}, v{r+1}")
    return e, ad, c

def dma_group(srd_, voff, soff, m0expr):
    return m0expr, [f"buffer_load_dwordx4 v{voff}, {s(srd_,4)}, s{soff} offen offset:{n*1024} lds" for n in range(4)]

def schedule(p, mf, sm=None, ds=(), dma=(), pre=(), post=(), extra_valu=(), ds_hi=None):
    NG = len(mf)
    sal = [[] for _ in range(NG)]; mem = [[] for _ in range(NG)]; val = [[] for _ in range(NG)]
    cost = [0]*NG
    for g, lst in dict(pre).items(): sal[g % NG] += lst
    e, ad, c = sm if sm else ([], [], [])
    epos = []
    if e:
        for i in range(32):
            g = (i * NG) // 32
            if NG < 64: g = (i * NG) // 32
            val[g].append(e[i]); cost[g] += 2; epos.append(g)
    free = [g for g in range(NG) if cost[g] == 0] or list(range(NG))
    hi = ds_hi if ds_hi is not None else NG - 8
    cand = [g for g in free if g < hi]
    if len(cand) < len(ds) + len(dma): cand = list(range(hi))
    items = list(ds)
    nd = len(dma)
    allm = [("ds", x) for x in items]
    for k, d in enumerate(dma):
        allm.insert(min(len(allm), (k * (len(items) + nd)) // max(nd, 1) + 2), ("dma", d))
    lastdma = -9
    for k, (kind, x) in enumerate(allm):
        g = cand[(k * len(cand)) // len(allm)] + (0 if items else 1)
        if kind == "ds":
            mem[g].append(x); cost[g] += 1
        else:
            if x[0]:
                if g == 0 or lastdma >= g - 1: mem[g].append(x[0] + "\ns_nop 0")
                else: sal[g-1].append(x[0])
            mem[g].append(x[1]); cost[g] += 2
            lastdma = g
    def place(ins, earliest):
        best = None
        for lim in (2, 3, 4, 99):
            for g in range(earliest, min(NG, earliest + (6 if lim < 99 else NG))):
                if cost[g] + 1 <= lim:
                    best = g; break
            if best is not None: break
        if best is None: best = NG - 1
        val[best].append(ins); cost[best] += 1
    tail = []
    work = []
    for i in range(len(ad)): work.append((epos[i] + 1, 0, ad[i]))
    for j in range(len(c)): work.append((epos[2*j+1] + 1, 1, c[j]))
    work.sort(key=lambda x: (x[0], -x[1]))
    for ear, _, ins in work:
        if ear >= NG: tail.append(ins)
        else: place(ins, ear)
    for k, ins in enumerate(extra_valu): place(ins, (k * NG) // len(extra_valu))
    for g in range(NG):
        p(mf[g])
        for x in sal[g] + mem[g] + val[g]: p(x)
    if tail: p("s_nop 0")
    for x in tail: p(x)
    for x in post: p(x)
    return sum(max(2, cc) for cc in cost)

def gen_attn(p, mfmasum=False, walk=True, fused=True):
    walk = OPT.get('walk', 1)
    import k_mega
    from k_pre import bf16_round, ln_stats
    L = NAME + "_kernel"
    sFL, sNON = k_mega.sFL, k_mega.sNON
    header(p, L)
    p("s_cmp_ge_u32 s2, 256")
    p("s_cbranch_scc1 L_attn_end")
    stamp_begin(p)
    p(f"s_load_dwordx4 s[36:39], s[0:1], {KA_C}")
    p(f"s_load_dwordx2 s[48:49], s[0:1], {KA_X}")
    p(f"s_load_dwordx2 s[46:47], s[0:1], {KA_WS}")
    p(f"s_load_dwordx2 s[34:35], s[0:1], {KA_DBG}")
    p(f"s_load_dwordx2 s[{sW}:{sW+1}], s[0:1], {KA_WQ}")
    p(f"s_load_dwordx2 s[{sK}:{sK+1}], s[0:1], {KA_K}")
    p(f"s_load_dwordx2 s[{sV}:{sV+1}], s[0:1], {KA_V}")
    p(f"s_load_dwordx2 s[52:53], s[0:1], {KA_WO}")
    p(f"s_load_dwordx2 s[56:57], s[0:1], {KA_W1}")
    p(f"s_load_dwordx2 s[60:61], s[0:1], {KA_W2}")
    p(f"s_load_dwordx2 s[50:51], s[0:1], {KA_OUT}")
    p("v_lshrrev_b32 v2, 6, v0")
    p("v_and_b32 v1, 63, v0")
    p(f"v_readfirstlane_b32 s{sWave}, v2")
    R1, R2 = sH, sO
    B_ = 128
    LDS_R = 9*SLOT
    p(f"v_mov_b32 v{B_+3}, 0")
    p(f"v_mov_b32 v{B_+4}, 0")
    p("s_cmp_ge_u32 s2, 128")
    p("s_cbranch_scc1 L_rb_ln")
    p("s_cmp_lt_u32 s2, 32")
    p("s_cbranch_scc1 L_rb_idle")
    p("s_lshr_b32 s30, s2, 3")
    p("s_sub_u32 s30, s30, 4")
    p("s_and_b32 s31, s30, 1")
    p("s_lshr_b32 s30, s30, 1")
    p("s_lshl_b32 s30, s30, 4")
    p("s_add_u32 s30, s30, s31")
    p("s_and_b32 s31, s2, 7")
    p("s_lshl_b32 s31, s31, 1")
    p("s_add_u32 s30, s30, s31")
    p("s_cmp_lt_u32 s2, 64")
    p("s_cbranch_scc1 L_rb_crit")
    p(f"v_lshrrev_b32 v{B_+1}, 2, v0")
    p(f"v_and_b32 v{B_+2}, 3, v0")
    p(f"v_mul_u32_u24 v{B_+3}, 6144, v{B_+1}")
    p(f"v_lshl_add_u32 v{B_+3}, v{B_+2}, 4, v{B_+3}")
    p(f"v_lshlrev_b32 v{B_+4}, 1, v{B_+1}")
    p("s_lshl_b32 s31, s30, 6")
    p("s_waitcnt lgkmcnt(0)")
    srd(p, R1, 38, 512*3072*2)
    srd(p, R2, 36, 1024)
    def gemv_loads():
        for i in range(8):
            p(f"buffer_load_dwordx4 {v(B_+16+4*i,4)}, v{B_+3}, {s(R1,4)}, s31 offen")
            if i < 7: p(f"s_add_u32 s31, s31, {64*6144}")
        for i in range(8):
            p(f"buffer_load_ushort v{B_+8+i}, v{B_+4}, {s(R2,4)}, 0 offen offset:{128*i}")
    if not OPT.get("defer", 0): gemv_loads()
    p("s_branch L_rb_done")
    p("L_rb_crit:")
    p(f"v_lshrrev_b32 v{B_+1}, 4, v0")
    p(f"v_and_b32 v{B_+2}, 15, v0")
    p(f"v_mul_u32_u24 v{B_+3}, 6144, v{B_+1}")
    p(f"v_lshl_add_u32 v{B_+3}, v{B_+2}, 4, v{B_+3}")
    p(f"v_lshlrev_b32 v{B_+4}, 1, v{B_+1}")
    p("s_bfe_u32 s30, s2, 0x20003")
    p(f"s_mul_i32 s31, s30, {128*6144}")
    p("s_and_b32 s32, s2, 7")
    p("s_lshl_b32 s32, s32, 8")
    p("s_add_u32 s31, s31, s32")
    p("s_lshl_b32 s33, s30, 8")
    p("s_lshl_b32 s30, s30, 12")
    p("s_lshl_b32 s32, s32, 1")
    p("s_add_u32 s30, s30, s32")
    p("s_waitcnt lgkmcnt(0)")
    srd(p, R1, 38, 512*3072*2)
    srd(p, R2, 36, 1024)
    for i in range(8):
        p(f"buffer_load_dwordx4 {v(B_+16+4*i,4)}, v{B_+3}, {s(R1,4)}, s31 offen")
        if i < 7: p(f"s_add_u32 s31, s31, {16*6144}")
    for i in range(8):
        p(f"buffer_load_ushort v{B_+8+i}, v{B_+4}, {s(R2,4)}, s33 offen offset:{32*i}")
    p("s_branch L_rb_done")
    p("L_rb_ln:")
    p("s_and_b32 s30, s2, 1")
    p("s_lshl_b32 s30, s30, 6")
    p("s_bfe_u32 s31, s2, 0x20001")
    p("s_lshl_b32 s31, s31, 4")
    p("s_add_u32 s30, s30, s31")
    p("s_bfe_u32 s31, s2, 0x40003")
    p("s_add_u32 s30, s30, s31")
    p("s_lshl_b32 s30, s30, 14")
    p(f"v_and_b32 v{B_+1}, 15, v0")
    p(f"v_bfe_u32 v{B_+2}, v0, 4, 2")
    p(f"v_lshlrev_b32 v{B_+4}, 10, v{B_+1}")
    p(f"v_lshl_add_u32 v{B_+4}, v2, 8, v{B_+4}")
    p(f"v_lshl_add_u32 v{B_+4}, v{B_+2}, 5, v{B_+4}")
    p("s_waitcnt lgkmcnt(0)")
    srd(p, R1, 48, 2048*512*2)
    srd(p, R2, 46, 2048*512*2, WS_H)
    for f in range(4):
        p(f"buffer_load_dwordx4 {v(B_+16+4*f,4)}, v{B_+4}, {s(R1,4)}, s30 offen offset:{(f>>1)*128 + (f&1)*16}")
    p("s_branch L_rb_done")
    p("L_rb_idle:")
    p("s_waitcnt lgkmcnt(0)")
    srd(p, R1, 34, 256)
    srd(p, R2, 46, 128, WS_FLAG + 6*32768)
    p(f"v_mov_b32 v{B_+1}, 0")
    p("s_cmp_lg_u32 s2, 0")
    p("s_cbranch_scc1 L_rb_touch")
    p(f"s_cmp_lg_u32 s{sWave}, 3")
    p("s_cbranch_scc1 L_rb_done")
    p("s_mov_b64 exec, 1")
    p(f"buffer_load_dword v{B_+2}, v{B_+1}, {s(R2,4)}, 0 offen sc1")
    p("s_waitcnt vmcnt(0)")
    p(f"v_add_u32 v{B_+2}, 1, v{B_+2}")
    p(f"v_or_b32 v{B_+2}, 0x80000000, v{B_+2}")
    p(f"buffer_store_dword v{B_+2}, v{B_+1}, {s(R1,4)}, 0 offen sc1")
    p(f"buffer_store_dword v{B_+2}, v{B_+1}, {s(R2,4)}, 0 offen sc1")
    p("s_mov_b64 exec, -1")
    p("s_branch L_rb_done")
    p("L_rb_touch:")
    def touches_():
        srd(p, R1, 0, 512*4096*2)
        p("s_lshr_b32 s30, s2, 3")
        p("s_lshl_b32 s30, s30, 2")
        p(f"s_add_u32 s30, s30, s{sWave}")
        p(f"v_lshrrev_b32 v{B_+1}, 4, v1")
        p(f"v_and_b32 v{B_+2}, 15, v1")
        p(f"v_lshlrev_b32 v{B_+1}, 13, v{B_+1}")
        p(f"v_lshl_add_u32 v{B_+1}, v{B_+2}, 7, v{B_+1}")
        p("s_lshl_b32 s31, s30, 15")
        p("s_bfe_u32 s32, s2, 0x20001")
        p("s_lshl_b32 s33, s32, 11")
        p("s_add_u32 s31, s31, s33")
        order = [7]
        for t in order:
            p(f"s_add_u32 s33, s31, {t*64*8192}")
            p(f"buffer_load_dword v{B_+8+t}, v{B_+1}, {s(R1,4)}, s33 offen")
        srd(p, R1, 36, 32*524288)
        srd(p, R2, 38, 32*524288)
        p("s_lshl_b32 s32, s32, 3")
        p("s_lshr_b32 s33, s30, 1")
        p("s_add_u32 s32, s32, s33")
        p("s_lshl_b32 s32, s32, 19")
        p("s_and_b32 s30, s30, 1")
        p("s_lshl_b32 s33, s30, 14")
        p("s_add_u32 s33, s33, s32")
        p(f"v_lshlrev_b32 v{B_+2}, 7, v1")
        p(f"buffer_load_dword v{B_+16}, v{B_+2}, {s(R1,4)}, s33 offen")
        p("s_add_u32 s33, s33, 8192")
        p(f"buffer_load_dword v{B_+17}, v{B_+2}, {s(R1,4)}, s33 offen")
        p("s_lshl_b32 s33, s30, 13")
        p("s_add_u32 s33, s33, s32")
        p(f"buffer_load_dword v{B_+18}, v{B_+2}, {s(R2,4)}, s33 offen")
    p(f"s_mov_b64 s[0:1], s[{sW}:{sW+1}]")
    p(f"s_mov_b64 s[36:37], s[{sK}:{sK+1}]")
    p(f"s_mov_b64 s[38:39], s[{sV}:{sV+1}]")
    if OPT.get("idlepf", 1) == 1: touches_()
    p("L_rb_done:")
    p("s_bfe_u32 s40, s2, 0x20001")
    p("s_lshl_b32 s40, s40, 3")
    p("s_bfe_u32 s41, s2, 0x30003")
    p("s_add_u32 s40, s40, s41")
    p("s_and_b32 s41, s2, 1")
    p("s_lshl_b32 s41, s41, 2")
    p("s_lshr_b32 s42, s2, 6")
    p("s_add_u32 s41, s41, s42")
    p("v_lshrrev_b32 v2, 4, v1")
    p("v_and_b32 v3, 15, v1")
    p(f"v_lshlrev_b32 v{vH}, 4, v1")
    p("v_lshlrev_b32 v28, 2, v2")
    p("v_xor_b32 v28, v28, v3")
    p(f"s_lshl_b32 s43, s{sWave}, 12")
    p("v_lshl_add_u32 v29, v2, 8, s43")
    p("v_lshlrev_b32 v30, 5, v29")
    p(f"v_lshl_add_u32 v{vDW}, v28, 4, v30")
    p("s_lshl_b32 s42, s41, 4")
    p(f"s_lshl_b32 s44, s{sWave}, 2")
    p("s_add_u32 s44, s44, s42")
    p("s_lshl_b32 s42, s40, 8")
    srd(p, sW, sW, 0, "s42")
    p(f"s_sub_u32 s{sW+2}, {512*4096*2}, s42")
    p(f"s_mov_b32 s{sM0K}, s43")
    p(f"s_add_u32 s{sM0V}, s43, {LDS_V}")
    srd(p, sFL, 46, 6*32768, WS_FLAG)
    p(f"s_mov_b32 s{sNON}, 0")

    vRing = lambda st: 32 + ((st + 1) & 3) * 16
    vCon = lambda st: 96 + (st & 1) * 16
    vTm = 24
    vACC = 128
    vWa = [8, 9, 10, 11]; vCa = 12
    issued = []
    def w_loads(T):
        out = []
        for n in range(4):
            sal = [f"s_mov_b32 s{sT0+n}, {T*64*8192 + n*(4*8192 - 1024)}", f"s_add_u32 m0, s{sM0V}, {(T & 3)*SLOT}"]
            out.append((sal, req(f"buffer_load_dwordx4 v{vDW}, {s(sW,4)}, s{sT0+n} offen offset:{n*1024} lds", sal), ("W", T)))
        return out
    def b_loads(st):
        out = []
        for qt in range(4):
            sal = [f"s_mov_b32 s{sT0+4+qt}, {qt*16384 + st*1024}"]
            out.append((sal, req(f"buffer_load_dwordx4 {v(vRing(st) + qt*4, 4)}, v{vH}, {s(sH,4)}, s{sT0+4+qt} offen sc1", sal), ("B", st)))
        return out
    def kv_group(which, tile):
        srd_, voff, m0b = (sK, vDK, sM0K) if which == "K" else (sV, vDV, sM0V)
        out = []
        for n in range(4):
            sal = [f"s_mov_b32 s{sT0+8}, {tile*SLOT}", f"s_add_u32 m0, s{m0b}, {(tile&3)*SLOT}"]
            out.append((sal, req(f"buffer_load_dwordx4 v{voff}, {s(srd_,4)}, s{sT0+8} offen offset:{n*1024} lds", sal), (which, tile)))
        return out
    def emit_loads(lst):
        last = None
        for sal, ins, tag in lst:
            sl = [x for x in sal if not ("m0" in x and x == last)]
            for x in sl:
                p(x)
                if "m0" in x: last = x
            if sl and "m0" in sl[-1]: p("s_nop 0")
            p(ins); issued.append(tag)
    def vm_after(tag):
        idx = max(i for i, t in enumerate(issued) if t == tag)
        return len(issued) - 1 - idx
    EPF = OPT.get("epf", 3)
    def wq_touch(sa, sb):
        p(f"s_lshr_b32 s{sa}, s2, 3")
        p(f"s_lshl_b32 s{sa}, s{sa}, 2")
        p(f"s_add_u32 s{sa}, s{sa}, s{sWave}")
        p(f"s_lshl_b32 s{sa}, s{sa}, 14")
        p(f"s_bfe_u32 s{sb}, s2, 0x30003")
        p(f"s_lshl_b32 s{sb}, s{sb}, 8")
        p(f"s_sub_u32 s{sa}, s{sa}, s{sb}")
        p(f"s_add_u32 s{sa}, s{sa}, {192*8192}")
        p("v_and_b32 v22, 1, v2")
        p("v_lshlrev_b32 v22, 13, v22")
        p("v_lshl_add_u32 v22, v3, 7, v22")
        p("v_lshrrev_b32 v23, 5, v1")
        p("v_lshl_add_u32 v22, v23, 30, v22")
        p(f"buffer_load_dword v23, v22, {s(sW,4)}, s{sa} offen")
    WPOS = OPT.get("wpos", "ABB")
    def early_w(pos):
        for T in range(3):
            if WPOS[T] != pos: continue
            p(f"s_add_u32 m0, s{sM0V}, {T*SLOT}")
            for n in range(4):
                p(f"s_mov_b32 s42, {T*64*8192 + n*(4*8192 - 1024)}")
                p(f"buffer_load_dwordx4 v{vDW}, {s(sW,4)}, s42 offen offset:{n*1024} lds"); issued.append(("W", T))
    early_w("A")
    NE = 4*sum(c in "AB" for c in WPOS) + (1 if EPF in (1, 3) else 0)
    if EPF == 1: wq_touch(42, 45)
    p("s_lshl_b32 s42, s40, 19")
    srd(p, sK, sK, 524288, "s42")
    srd(p, sV, sV, 524288, "s42")
    srd(p, 52, 52, 4096*512*2)
    srd(p, 56, 56, 512*1376*2)
    srd(p, 60, 60, 512*1376*2)
    p(f"s_mov_b32 s{sRetry}, 0")
    p(f"s_lshl_b32 s42, s{sWave}, 2")
    p("v_or_b32 v28, s42, v2")
    p("v_xor_b32 v28, v28, v3")
    p(f"v_lshl_add_u32 v{vDK}, v28, 4, v29")
    p(f"s_and_b32 s42, s{sWave}, 1")
    p("s_lshl_b32 s42, s42, 2")
    p("v_or_b32 v28, s42, v2")
    p("v_lshlrev_b32 v28, 1, v28")
    p("v_xor_b32 v28, v28, v3")
    p(f"v_lshl_add_u32 v{vDV}, v28, 4, v29")
    p("v_lshrrev_b32 v28, 2, v3")
    p("v_lshl_add_u32 v28, v2, 4, v28")
    p("v_lshlrev_b32 v28, 8, v28")
    p("v_lshl_add_u32 v28, v3, 4, v28")
    p(f"v_add_u32 v{vWa[0]}, {LDS_V}, v28")
    for s_ in range(1, 4): p(f"v_xor_b32 v{vWa[s_]}, {s_<<6}, v{vWa[0]}")
    p(f"v_lshlrev_b32 v{vCa}, 6, v2")
    p(f"v_add_u32 v{vCa}, {LDS_X}, v{vCa}")
    p("v_lshrrev_b32 v28, 2, v3")
    p("v_lshlrev_b32 v28, 12, v28")
    p("v_and_b32 v29, 3, v3")
    p("v_lshl_add_u32 v28, v29, 8, v28")
    p("v_xor_b32 v29, v2, v3")
    p(f"v_lshl_add_u32 v{vKa[0]}, v29, 4, v28")
    for s_ in range(1, 4): p(f"v_xor_b32 v{vKa[s_]}, {s_<<6}, v{vKa[0]}")
    for r in [20, 21, 24, 25, 26, 27, 31, 13, 14, 15, 49, B_+5, B_+6] + list(range(96, 103)) + list(range(232, 236)) + [248]: p(f"v_mov_b32 v{r}, 0")
    if walk:
        p(";@WALK 0 0123")
        p(";@BODY")
    p("v_add_u32 v28, -32, v1")
    p("v_cmp_gt_u32 s[32:33], 48, v1")
    p("s_lshr_b32 s42, s41, 2")
    p("s_and_b32 s45, s41, 3")
    p("v_cndmask_b32 v28, v28, v1, s[32:33]")
    p("s_lshl_b32 s45, s45, 1")
    p("s_or_b32 s42, s42, s45")
    p("s_add_u32 s42, s42, 128")
    p("v_lshl_add_u32 v29, v28, 3, s42")
    p("v_add_u32 v30, -16, v28")
    p("s_and_b32 s45, s2, 7")
    p("s_add_u32 s45, s45, 256")
    p("v_lshl_add_u32 v30, v30, 3, s45")
    p("v_cmp_gt_u32 s[32:33], 16, v28")
    p("s_lshl_b32 s42, s2, 7")
    p("v_mov_b32 v14, s42")
    p("v_cndmask_b32 v29, v30, v29, s[32:33]")
    p("v_lshlrev_b32 v13, 7, v29")
    p("s_sub_u32 s45, s2, 32")
    p("s_lshl_b32 s45, s45, 3")
    p("s_add_u32 s45, s45, 256")
    p("v_add_lshl_u32 v15, s45, v1, 7")
    p("s_lshr_b32 s45, s2, 5")
    p("s_cmp_eq_u32 s45, 1")
    p("s_cselect_b64 s[32:33], -1, 0")
    p("s_cselect_b32 s69, 0xff, 1")
    p("v_cndmask_b32 v14, v14, v15, s[32:33]")
    early_w("B")
    if EPF == 3: wq_touch(42, 45)
    stamp(p, "c")
    p("s_cmp_ge_u32 s2, 128")
    p("s_cbranch_scc1 L_rd_ln")
    p("s_cmp_lt_u32 s2, 32")
    p("s_cbranch_scc1 L_rd_idle")
    b = B_
    if OPT.get("defer", 0):
        p("s_cmp_lt_u32 s2, 64")
        p("s_cbranch_scc1 L_rd_gemv")
        gemv_loads()
        p("L_rd_gemv:")
    srd(p, R1, 46, 3072*4, WS_MOD)
    for i in range(8): p(f"v_mov_b32 v{b+48+i}, 0")
    p(f"v_lshrrev_b32 v{b+5}, 4, v0")
    p(f"v_lshlrev_b32 v{b+5}, 7, v{b+5}")
    p(f"v_lshl_add_u32 v{b+5}, v{b+2}, 5, v{b+5}")
    p(f"v_add_u32 v{b+5}, {LDS_R}, v{b+5}")
    p(f"s_waitcnt vmcnt({NE})")
    stamp(p, "d")
    for i in range(8): p(f"v_lshlrev_b32 v{b+8+i}, 16, v{b+8+i}")
    for i in range(8): p(f"v_mul_f32 v{b+56+i}, {hexf(-LOG2E)}, v{b+8+i}")
    for i in range(8): p(f"v_exp_f32 v{b+56+i}, v{b+56+i}")
    for i in range(8): p(f"v_add_f32 v{b+56+i}, 1.0, v{b+56+i}")
    for i in range(8): p(f"v_rcp_f32 v{b+56+i}, v{b+56+i}")
    for i in range(8): p(f"v_mul_f32 v{b+8+i}, v{b+8+i}, v{b+56+i}")
    for i in range(8): bf16_round(p, b+8+i, b+8+i)
    for i in range(8):
        for d in range(4):
            r = b + 16 + 4*i + d; t = b + 56 + 2*(d & 1)
            p(f"v_lshlrev_b32 v{t}, 16, v{r}")
            p(f"v_and_b32 v{t+1}, 0xffff0000, v{r}")
            p(f"v_fmac_f32 v{b+48+2*d}, v{b+8+i}, v{t}")
            p(f"v_fmac_f32 v{b+49+2*d}, v{b+8+i}, v{t+1}")
    p("s_cmp_lt_u32 s2, 64")
    p("s_cbranch_scc1 L_rd_crit")
    p("v_cmp_gt_u32 s[32:33], 4, v3")
    p("s_nop 0")
    for rot in (4, 8):
        for i in range(8): p(f"v_add_f32_dpp v{b+48+i}, v{b+48+i}, v{b+48+i} row_ror:{rot} row_mask:0xf bank_mask:0xf")
    p("s_mov_b64 exec, s[32:33]")
    p(f"ds_write_b128 v{b+5}, {v(b+48,4)}")
    p(f"ds_write_b128 v{b+5}, {v(b+52,4)} offset:16")
    p("s_mov_b64 exec, -1")
    p(f"v_and_b32 v{b+6}, 31, v1")
    p(f"v_lshlrev_b32 v{b+6}, 2, v{b+6}")
    p(f"v_add_u32 v{b+5}, {LDS_R}, v{b+6}")
    cs = LOG2E / (128 ** 0.5)
    p("s_lshr_b32 s31, s30, 4")
    p("s_cmp_eq_u32 s31, 4")
    p("s_cselect_b32 s32, 1.0, 0")
    p("s_lshl_b32 s30, s30, 7")
    p("s_waitcnt lgkmcnt(0)")
    p("s_barrier")
    p(f"s_cmp_lg_u32 s{sWave}, 3")
    p("s_cbranch_scc1 L_rd_done")
    for i in range(16): p(f"ds_read_b32 v{b+16+i}, v{b+5} offset:{128*i}")
    p("s_waitcnt lgkmcnt(0)")
    for st in (8, 4, 2, 1):
        for i in range(st): p(f"v_add_f32 v{b+16+i}, v{b+16+i}, v{b+16+i+st}")
    bf16_round(p, b+16, b+16)
    p(f"v_add_f32 v{b+16}, s32, v{b+16}")
    bf16_round(p, b+16, b+16)
    p("s_mov_b64 exec, 0xffffffff")
    p(f"buffer_store_dword v{b+16}, v{b+6}, {s(R1,4)}, s30 offen sc1")
    p("s_mov_b64 exec, -1")
    p("s_branch L_rd_done")
    p("L_rd_crit:")
    p(f"v_lshlrev_b32 v{b+5}, 5, v0")
    p(f"v_add_u32 v{b+5}, {LDS_R}, v{b+5}")
    p(f"ds_write_b128 v{b+5}, {v(b+48,4)}")
    p(f"ds_write_b128 v{b+5}, {v(b+52,4)} offset:16")
    p(f"v_lshlrev_b32 v{b+6}, 3, v1")
    p(f"v_add_u32 v{b+5}, {LDS_R}, v{b+6}")
    srd(p, R1, 46, 16384, WS_MODP)
    p("s_waitcnt lgkmcnt(0)")
    p("s_barrier")
    p(f"s_cmp_lg_u32 s{sWave}, 3")
    p("s_cbranch_scc1 L_rd_done")
    for i in range(16): p(f"ds_read_b64 {v(b+16+2*i,2)}, v{b+5} offset:{512*i}")
    p("s_waitcnt lgkmcnt(0)")
    for st in (16, 8, 4, 2):
        for i in range(st): p(f"v_add_f32 v{b+16+i}, v{b+16+i}, v{b+16+i+st}")
    p(f"buffer_store_dwordx2 {v(b+16,2)}, v{b+6}, {s(R1,4)}, s30 offen sc1")
    p("s_branch L_rd_done")
    p("L_rd_idle:")
    if OPT.get("idlepf", 1) == 2:
        p("s_cmp_eq_u32 s2, 0")
        p("s_cbranch_scc1 L_rd_done")
        touches_()
    p("s_branch L_rd_done")
    p("L_rd_ln:")
    p(f"v_add_u32 v{b+6}, s43, v{vH}")
    p(f"v_lshlrev_b32 v{b+8}, 4, v{b+1}")
    p(f"v_add_u32 v{b+8}, {LDS_R}, v{b+8}")
    p(f"s_lshl_b32 s31, s{sWave}, 2")
    p(f"v_add_u32 v{b+7}, s31, v{b+8}")
    p(f"s_waitcnt vmcnt({NE})")
    stamp(p, "d")
    for r in range(16):
        p(f"v_lshlrev_b32 v{b+32+2*r}, 16, v{b+16+r}")
        p(f"v_and_b32 v{b+33+2*r}, 0xffff0000, v{b+16+r}")
    ln_stats(p, b+32, 32, b+16, b+7, b+8, 0, b+10, b+11)
    for i in range(32): p(f"v_sub_f32 v{b+32+i}, v{b+32+i}, v{b+10}")
    for i in range(32): p(f"v_mul_f32 v{b+32+i}, v{b+32+i}, v{b+11}")
    for r in range(16):
        p(f"v_cvt_pk_f16_f32 v{b+16+r}, v{b+32+2*r}, v{b+33+2*r}")
    for f in range(4):
        p(f"buffer_store_dwordx4 {v(b+16+4*f,4)}, v{b+6}, {s(R2,4)}, s30 offen offset:{1024*f} sc1")
    p("L_rd_done:")
    stamp(p, "e")
    p(f"s_cmp_eq_u32 s{sWave}, 3")
    p("s_cbranch_scc1 L_e3")
    p("s_waitcnt vmcnt(0)")
    p("s_branch L_ej")
    p("L_e3:")
    srd(p, R1, 34, 256)
    p("s_mov_b32 s31, 0")
    p("v_mov_b32 v28, 0")
    p("L_e3_tag:")
    p(f"buffer_load_dword v29, v28, {s(R1,4)}, 0 offen sc1")
    p("s_add_u32 s31, s31, 1")
    p("s_waitcnt vmcnt(0)")
    p(f"v_readfirstlane_b32 s{sNON}, v29")
    p(f"s_cmp_gt_u32 s31, {1 << 18}")
    p("s_cbranch_scc1 L_ej")
    p(f"s_cmp_eq_u32 s{sNON}, 0")
    p("s_cbranch_scc1 L_e3_tag")
    p("L_ej:")
    p("s_barrier")
    def win0(p):
        p("s_lshl_b32 s42, s44, 14")
        p(f"s_add_u32 s42, s42, {WS_H}")
        srd(p, sH, 46, 65536, "s42")
        srd(p, sO, 46, 16384, WS_MODP)
        p(f"s_cmp_ge_u32 s{sWave}, 2")
        p("s_cselect_b32 s42, 1.0, 0")
        p(f"s_lshl_b32 s45, s{sWave}, 10")
        p(f"v_add_u32 v31, s45, v{vH}")
        p(f"v_add_u32 v31, {LDS_X}, v31")
        for i in range(128): p(f"v_accvgpr_write_b32 a{i}, 0")
        if walk and OPT.get("walk2", 1): p(";@WALK 2 012")
    k_mega.sync(p, 0, 4, win0, 13, vflag=14, vval=28, vtmp=29, pre_barrier=False, lanes=69, sleep=OPT.get('sleep0', 0))
    stamp(p, "s0")
    if OPT.get("walk2", 1): p(";@ZONE 2")
    for q in range(4):
        p(f"buffer_load_dwordx4 {v(96+4*q,4)}, v{vH}, {s(sO,4)}, s45 offen sc1"); issued.append(("C", 0))
        if q < 3: p("s_add_u32 s45, s45, 4096")
    emit_loads(b_loads(0) + b_loads(1) + b_loads(2))
    p("v_mov_b32 v28, s42")
    early_w("P")
    if EPF == 2:
        wq_touch(42, 45); issued.append("pf")
    p("s_lshl_b32 s42, s44, 17")
    p("s_lshl_b32 s45, s40, 12")
    p("s_add_u32 s42, s42, s45")
    p(f"s_add_u32 s42, s42, {WS_O}")
    srd(p, sO, 46, 3*131072 + 4096, "s42")
    p(f"s_waitcnt vmcnt({vm_after(('C',0))})")
    for r in range(4): p(f"v_add_f32 v{96+r}, v{96+r}, v{100+r}")
    for r in range(4): p(f"v_add_f32 v{104+r}, v{104+r}, v{108+r}")
    for r in range(4): p(f"v_add_f32 v{96+r}, v{96+r}, v{104+r}")
    for r in range(4): bf16_round(p, 96+r, 96+r)
    for r in range(4): p(f"v_add_f32 v{96+r}, v{96+r}, v28")
    for r in range(4): bf16_round(p, 96+r, 96+r)
    for r in range(4): p(f"v_mul_f32 v{24+r}, {hexf(cs)}, v{96+r}")
    p("ds_write_b128 v31, v[24:27]")
    def wread(st):
        T, u = st >> 1, st & 1
        out = []
        for dt in range(8):
            for hh in range(2):
                off = (T & 3)*SLOT + (2*u + hh)*1024 + (dt & 1)*8
                out.append(f"ds_read_b64_tr_b16 {a(aV + (st & 1)*32 + dt*4 + hh*2, 2)}, v{vWa[dt >> 1]} offset:{off}")
        return out
    def cread(st):
        T, u = st >> 1, st & 1
        o = T*256 + u*32
        c = vCon(st)
        return [f"ds_read_b128 {v(c,4)}, v{vCa} offset:{2048+o}", f"ds_read_b128 {v(c+4,4)}, v{vCa} offset:{2048+o+16}",
                f"ds_read_b128 {v(c+8,4)}, v{vCa} offset:{o}", f"ds_read_b128 {v(c+12,4)}, v{vCa} offset:{o+16}"]
    def modulate(st):
        out = []
        c = vCon(st)
        for qt in range(4):
            r = vRing(st) + qt*4
            for hf in range(2):
                for i in range(2*hf, 2*hf+2):
                    for e in range(2):
                        j = 2*i + e
                        out.append(f"v_fma_mix_f32 v{vTm+j}, v{r+i}, v{c+j}, v{c+8+j} op_sel:[{e},0,0] op_sel_hi:[1,0,0]")
                for i in range(2*hf, 2*hf+2):
                    out.append(f"v_cvt_pk_bf16_f32 v{r+i}, v{vTm+2*i}, v{vTm+2*i+1}")
        return out
    p("s_waitcnt lgkmcnt(0)")
    p("s_barrier")
    stamp(p, 1)
    for x in cread(0) + cread(1) + wread(0)[:8]: p(x)
    p(f"s_waitcnt vmcnt({vm_after(('B',0))}) lgkmcnt(12)")
    for x in wread(0)[8:]: p(x)
    for x in modulate(0): p(x)
    kvq = {7: kv_group("K",0), 8: kv_group("K",1), 9: kv_group("V",0), 10: kv_group("K",2), 11: kv_group("V",1), 12: kv_group("K",3), 13: kv_group("V",2)}
    def qconv(s_):
        out = []
        for qt in range(4):
            d_ = vQ + (qt*4+s_)*4
            for t in range(2):
                src = vACC + ((2*s_+t)*4+qt)*4
                out.append(f"v_cvt_pk_bf16_f32 v{d_+2*t}, v{src}, v{src+1}")
                out.append(f"v_cvt_pk_bf16_f32 v{d_+2*t+1}, v{src+2}, v{src+3}")
        return out
    for st in range(16):
        T, u = st >> 1, st & 1
        need = []
        if st + 1 < 16: need.append(vm_after(("B", st+1)))
        if u == 1: need.append(vm_after(("W", T+1)) if T < 7 else vm_after(("K", 0)))
        p(f"s_waitcnt vmcnt({min(need)}) lgkmcnt(0)")
        if u == 1: p("s_barrier")
        mf = []
        for dt in range(8):
            for qt in range(4):
                d_ = vACC + (dt*4+qt)*4
                mf.append(f"{MF} {v(d_,4)}, {a(aV + (st & 1)*32 + dt*4, 4)}, {v(vRing(st) + qt*4, 4)}, {'0' if st == 0 else v(d_,4)}")
        ds = (wread(st+1) if st < 15 else kread(0, 0, 0) + kread(1, 1, 0))
        if st + 2 < 16: ds = interleave(ds, cread(st+2))
        ld = []
        if st + 3 < 16: ld += b_loads(st+3)
        if T + 3 < 8: ld += w_loads(T+3)[2*u:2*u+2]
        ld += kvq.get(st, [])
        mems = interleave([([], x, 1) for x in ds], [(sl, ins, 2) for sl, ins, tag in ld])
        for sl, ins, tag in ld: issued.append(tag)
        if st < 15:
            sal, mem, val = pack_gaps(32, mems, modulate(st+1), mem_hi=28)
        else:
            sal, mem, val = pack_gaps(32, mems, [], mem_hi=16)
            for s_ in range(3):
                cv = qconv(s_)
                for k, x in enumerate(cv): val[min(31, 8*s_ + 12 + k // 2)].append(x)
        emit_gaps(p, mf, sal, mem, val)
    stamp(p, 2)
    p("v_and_b32 v3, 15, v1")
    p("v_lshrrev_b32 v2, 4, v1")
    p("v_lshrrev_b32 v28, 2, v3")
    p("v_lshl_add_u32 v29, v2, 4, v28")
    p("v_lshlrev_b32 v29, 8, v29")
    p("v_and_b32 v30, 1, v2")
    p("v_lshl_add_u32 v28, v30, 2, v28")
    p("v_lshl_add_u32 v29, v28, 5, v29")
    p("v_and_b32 v30, 3, v3")
    p("v_lshl_add_u32 v29, v30, 3, v29")
    p(f"v_add_u32 v{vVa[0]}, {LDS_V}, v29")
    for x in qconv(3): p(x)
    for d in range(1, 8): p(f"v_xor_b32 v{vVa[d]}, {d<<5}, v{vVa[0]}")
    for q in range(4): p(f"v_mov_b32 v{vM[q]}, 0xff7fffff")
    if mfmasum:
        for r in range(4): p(f"v_mov_b32 v{vONE+r}, 0x3f803f80")
    if fused: k_mega.attn_side_setup(p)
    sPF = sW; sPFo = 40; sGW = 41
    p(f"s_lshl_b32 s{sGW}, s2, 2")
    p(f"s_add_u32 s{sGW}, s{sGW}, s{sWave}")
    p(f"s_lshl_b32 s{sGW}, s{sGW}, 13")
    p(f"v_lshlrev_b32 v{vTMP+1}, 7, v1")

    p("L_attn_restart:")
    p("s_waitcnt lgkmcnt(0)")
    zl = [f"v_mov_b32 v{r}, 0" for r in (range(vLS, vLS+16) if mfmasum else vL)]
    mf = qk_mfmas(0, 0, czero=True)
    val = [[] for _ in range(32)]
    for k, x in enumerate(zl): val[k // 2].append(x)
    for qt in range(3):
        for k in range(4):
            b = vS + qt*8 + 2*k
            val[qt*8 + 16 + k if qt*8 + 16 + k < 32 else 31].append(f"v_max3_f32 v{vM[qt]}, v{vM[qt]}, v{b}, v{b+1}")
    v31 = val[31]; val[31] = []
    emit_gaps(p, mf, [[]]*32, [[]]*32, val)
    for x in v31: p(x)
    p("s_nop 3")
    for k in range(4):
        b = vS + 24 + 2*k
        p(f"v_max3_f32 v{vM[3]}, v{vM[3]}, v{b}, v{b+1}")
    xlane_reduce(p, "v_max_f32", vM, vT)
    for qt in range(4):
        for r in range(4): p(f"v_sub_f32 v{vNEG+qt*4+r}, 0, v{vM[qt]}")
    for i in range(8): p(f"v_sub_f32 v{vS+i}, v{vS+i}, v{vM[i//8]}")
    subs = [f"v_sub_f32 v{vS+i}, v{vS+i}, v{vM[i//8]}" for i in range(8, 32)]
    p(f"s_mov_b32 s{sOffKV}, {4*SLOT}")
    p(f"s_mov_b32 s{sCnt}, 0")
    p(f"s_cmp_lt_u32 s{sGW}, {768*8192}")
    for r in range(3): p(f"s_cselect_b32 s{sPF+r}, s{56+r}, s{60+r}")
    p(f"s_and_b32 s{sPFo}, s{sGW}, {256*8192-1}")
    p(f"s_cmp_lt_u32 s{sGW}, {512*8192}")
    for r in range(3): p(f"s_cselect_b32 s{sPF+r}, s{52+r}, s{sPF+r}")
    p(f"s_cselect_b32 s{sPFo}, s{sGW}, s{sPFo}")
    p(f"buffer_load_dword v{vTMP+2}, v{vTMP+1}, {s(sPF,4)}, s{sPFo} offen")
    sTA, sTB, sTC = 40, 44, 45
    for r in (sTA, sTB, sTC): p(f"s_mov_b32 s{r}, 0x40000000")
    def pf_advance():
        o = [f"s_lshr_b32 s31, s{sGW}, 18", "s_lshl_b32 s31, s31, 2", f"s_add_u32 s31, s31, s{sWave}",
             "s_lshl_b32 s32, s31, 14", "s_add_u32 s33, s32, 8192", "s_lshl_b32 s31, s31, 13",
             "s_and_b32 s34, s39, 0x300000", "s_add_u32 s31, s31, s34", f"s_cmp_eq_u32 s{sCnt}, {OPT.get('pfit', 7)}",
             f"s_cselect_b32 s{sTA}, s32, 2.0", f"s_cselect_b32 s{sTB}, s33, 2.0", f"s_cselect_b32 s{sTC}, s31, 2.0"]
        return o
    touches = {"a": (60, sTA), "b": (60, sTB), "c": (56, sTA), "d": (56, sTB), "e": (52, sTC)}

    def period(u):
        do_qk = (u + 2 <= 63); do_sm = (0 <= u + 1 <= 63); do_pv = (u >= 0)
        mf = []
        if do_qk: mf += qk_mfmas((u+2) & 1, (u+2) & 1)
        if do_pv: mf += pv_mfmas(u & 1, u & 1, mfmasum)
        sm = sm_ops((u+1) & 1, (u+1) & 1, mfmasum) if do_sm else None
        ds = []
        kr = kread((u+3) & 1, (u+3) & 1, ((u+3) >> 1) & 3) if u + 3 <= 63 else []
        vr = vread("a", aV + ((u+1) & 1)*32, (u+1) & 1, ((u+1) >> 1) & 3) if u + 1 <= 63 else []
        while kr or vr:
            if kr: ds.append(kr.pop(0))
            if vr: ds.append(vr.pop(0))
        t = (u + 1) >> 1
        dma = []; pre = {}
        if u < 62:
            if (u & 1) == 1:
                pre[0] = ["s_waitcnt vmcnt(16)", "s_barrier"]
                for n in range(4):
                    dma.append((f"s_add_u32 m0, s{sM0K}, {(t & 3)*SLOT}" if n == 0 else None,
                                req(f"buffer_load_dwordx4 v{vDK}, {s(sK,4)}, s{sOffKV} offen offset:{n*1024} lds", [f"s_add_u32 m0, s{sM0K}, {(t & 3)*SLOT}"])))
            else:
                pre[0] = [f"s_sub_u32 s{sT0}, s{sOffKV}, {SLOT}"]
                pre[2] = [f"s_add_u32 s{sOffKV}, s{sOffKV}, {SLOT}"]
                for n in range(4):
                    dma.append((f"s_add_u32 m0, s{sM0V}, {((t+3) & 3)*SLOT}" if n == 0 else None,
                                req(f"buffer_load_dwordx4 v{vDV}, {s(sV,4)}, s{sT0} offen offset:{n*1024} lds", [f"s_add_u32 m0, s{sM0V}, {((t+3) & 3)*SLOT}", f"s_sub_u32 s{sT0}, s{sOffKV}, {SLOT}"])))
        NG = len(mf)
        if ds: pre.setdefault(NG-1, []).append("s_waitcnt lgkmcnt(0)")
        return mf, sm, ds, dma, pre

    mf, sm, ds, dma, pre = period(-1)
    e, ad, c = sm
    e = [ (subs[i] + "\n" if i < len(subs) else "") + e[i] for i in range(32)]
    schedule(p, mf, (e, ad, c), ds, dma, pre, ds_hi=len(mf)-4)
    stamp(p, 3)
    p("s_branch L_attn_p0")
    p(".p2align 6")
    p("L_attn_loop:")
    for u in range(1, 9):
        if u == 8: p("L_attn_p0:")
        mf, sm, ds, dma, pre = period(u)
        NG = len(mf)
        tl = OPT.get("touch", "xxecd")
        if fused and 1 <= u <= len(tl) and tl[u-1] in touches:
            sr, so = touches[tl[u-1]]
            dma.append((None, f"buffer_load_dword v{vTMP+2+u}, v{vTMP+1}, {s(sr,4)}, s{so} offen"))
        if u == 7 and fused:
            for k_, x in enumerate(pf_advance()): pre.setdefault(12 + 2*k_, []).append(x)
        if u == 5:
            pre.setdefault(NG-3, []).append(f"s_add_u32 s{sCnt}, s{sCnt}, 1")
            pre.setdefault(NG-2, []).append(f"s_cmp_eq_u32 s{sCnt}, 8")
        c_ = schedule(p, mf, sm, ds, dma, pre)
        if u == 1: print("attn period slots:", c_, "of", 2*len(mf))
        if u == 5: p("s_cbranch_scc1 L_attn_tail")
    p("s_branch L_attn_loop")
    p("L_attn_tail:")
    stamp(p, 4)
    if not fused:
        p(f"s_lshr_b32 s{sT0}, s2, 3")
        p(f"s_lshl_b32 s{sT0}, s{sT0}, 2")
        p(f"s_add_u32 s{sT0}, s{sT0}, s{sWave}")
        p(f"s_lshl_b32 s{sT0}, s{sT0}, 13")
        p(f"s_bfe_u32 s{sT0+1}, s2, 0x20001")
        p(f"s_lshl_b32 s{sT0+1}, s{sT0+1}, 20")
        p(f"s_add_u32 s{sT0}, s{sT0}, s{sT0+1}")
        p(f"buffer_load_dword v{vTMP+5}, v{vTMP+1}, s[52:55], s{sT0} offen")
    for u in (62, 63):
        mf, sm, ds, dma, pre = period(u)
        if u == 63: p("s_nop 1")
        if fused:
            for T in ((0, 1) if u == 62 else (2, 3)):
                dma += [("\n".join(sl), ins) for sl, ins, tag in k_mega.wo_dma(T)]
        schedule(p, mf, sm, ds, dma, pre, ds_hi=len(mf)-4)
    stamp(p, 5)
    if mfmasum:
        p("s_nop 7")
        for qt in range(4): p(f"v_mov_b32 v{vL[qt]}, v{vLS+qt*4}")
    else:
        xlane_reduce(p, "v_add_f32", vL, vT)
    vR = vNEG
    p("s_waitcnt vmcnt(16)")
    for qt in range(4): p(f"v_rcp_f32 v{vR+qt}, v{vL[qt]}")
    p(f"v_add_f32 v{vT[0]}, v{vL[0]}, v{vL[1]}")
    p(f"v_add_f32 v{vT[1]}, v{vL[2]}, v{vL[3]}")
    p(f"v_add_f32 v{vT[0]}, v{vT[0]}, v{vT[1]}")
    p(f"v_mov_b32 v{vT[1]}, {hexf(2.0**40)}")
    p(f"v_cmp_nlt_f32 s[{sT0+2}:{sT0+3}], v{vT[0]}, v{vT[1]}")
    p(f"s_cmp_lg_u64 s[{sT0+2}:{sT0+3}], 0")
    p(f"s_cselect_b32 s{sT0+1}, 1, 0")
    p(f"s_lshl_b32 s{sT0+2}, s{sWave}, 2")
    p(f"s_add_u32 s{sT0+2}, s{sT0+2}, {LDS_X}")
    p(f"v_mov_b32 v{vT[0]}, s{sT0+2}")
    p(f"v_mov_b32 v{vT[1]}, s{sT0+1}")
    p(f"v_mov_b32 v{vT[2]}, {LDS_X}")
    p(f"ds_write_b32 v{vT[0]}, v{vT[1]}")
    k = 0
    for qt in range(4):
        p(f"s_mov_b32 s{sT0+2}, {qt*131072}")
        for s_ in range(4):
            b = vS + (k & 3)*8; o = vP + (k & 3)*4; k += 1
            for t in range(2):
                for r in range(4): p(f"v_accvgpr_read_b32 v{b+4*t+r}, a{aO + ((2*s_+t)*4+qt)*4 + r}")
            if fused and k <= 12:
                sl, ins, tag = k_mega.wo_dma(4 + (k-1) // 4)[(k-1) % 4]
                for x in sl: p(x)
                p(f"v_mul_f32 v{b}, v{b}, v{vR+qt}")
                p(ins)
            else:
                p(f"v_mul_f32 v{b}, v{b}, v{vR+qt}")
            for r in range(1, 8): p(f"v_mul_f32 v{b+r}, v{b+r}, v{vR+qt}")
            for r in range(4): p(f"v_cvt_pk_bf16_f32 v{o+r}, v{b+2*r}, v{b+2*r+1}")
            p(f"buffer_store_dwordx4 {v(o,4)}, v{vH}, {s(sO,4)}, s{sT0+2} offen offset:{s_*1024}" + (" sc1" if fused and not OPT.get("plainO") else ""))
    stamp(p, 6)
    if fused:
        p("s_waitcnt vmcnt(0) lgkmcnt(0)")
        p("s_barrier")
        p(f"s_cmp_lg_u32 s{sRetry}, 0")
        p("s_cbranch_scc1 L_attn_voted")
    else:
        p(f"s_cmp_lg_u32 s{sRetry}, 0")
        p("s_cbranch_scc1 L_attn_end")
        p("s_waitcnt lgkmcnt(0)")
        p("s_barrier")
    p(f"ds_read_b128 {v(vNEG+4,4)}, v{vT[2]}")
    p("s_waitcnt lgkmcnt(0)")
    p(f"v_or_b32 v{vNEG+4}, v{vNEG+4}, v{vNEG+5}")
    p(f"v_or3_b32 v{vNEG+4}, v{vNEG+4}, v{vNEG+6}, v{vNEG+7}")
    p("s_nop 0")
    p(f"v_readfirstlane_b32 s{sT0+1}, v{vNEG+4}")
    p("s_nop 3")
    p(f"s_cmp_eq_u32 s{sT0+1}, 0")
    p("s_cbranch_scc0 L_attn_fallback")
    if fused:
        p("L_attn_voted:")
        k_mega.gen_tail(p)
    stamp_end(p, 0, tid=OPT.get('stid', 192))
    p("L_attn_end:")
    p("s_endpgm")
    p("L_attn_fallback:")
    p(f"s_mov_b32 s{sRetry}, 1")
    p("s_waitcnt vmcnt(0)")
    p(f"v_lshrrev_b32 v{vT[0]}, 4, v{vH}")
    p(f"v_and_b32 v{vT[1]}, 15, v{vT[0]}")
    p(f"v_lshrrev_b32 v{vT[0]}, 4, v{vT[0]}")
    p(f"v_lshlrev_b32 v{vT[1]}, 8, v{vT[1]}")
    p(f"v_lshl_add_u32 v{vT[0]}, v{vT[0]}, 4, v{vT[1]}")
    p(f"s_mov_b32 s{sT0}, 0")
    for i in range(128): p(f"v_accvgpr_write_b32 a{i}, 0")
    p("L_attn_maxloop:")
    p(f"s_add_u32 s{sT0+1}, s{sT0}, 4096")
    for kt in range(2):
        for s_ in range(4):
            p(f"buffer_load_dwordx4 {a(aK + (kt*4+s_)*4, 4)}, v{vT[0]}, {s(sK,4)}, s{sT0+kt} offen offset:{s_*64}")
    p("s_waitcnt vmcnt(0)")
    for x in qk_mfmas(0, 0, czero=True): p(x)
    p("s_nop 7")
    for k in range(4):
        for qt in range(4):
            b = vS + qt*8 + 2*k
            p(f"v_max3_f32 v{vM[qt]}, v{vM[qt]}, v{b}, v{b+1}")
    p(f"s_add_u32 s{sT0}, s{sT0}, 8192")
    p(f"s_cmp_lt_u32 s{sT0}, 524288")
    p("s_cbranch_scc1 L_attn_maxloop")
    p("s_barrier")
    for w_, t in (("K",0),("K",1),("V",0),("K",2),("V",1),("K",3),("V",2)):
        emit_loads(kv_group(w_, t))
    p("s_waitcnt vmcnt(24)")
    p("s_barrier")
    for x in kread(0, 0, 0) + kread(1, 1, 0): p(x)
    p("s_branch L_attn_restart")
    if walk: print("attn pages:", add_walk(p, "attn", sWave, end_label="L_attn_end"))
    return L, descriptor(L, 512, 72, 256), f"grid=(256,1,1) block=(256,1,1) lds={163840 if fused else LDS_X + 4096}"
```

```python
from common import *
from k_pre import bf16_round, ln_stats
from k_tail import row_reduce8
MF = "v_mfma_f32_16x16x32_bf16"
SLOT = 16384
LDS_X = 131072
sWave = 24
sFL, sB, sOUT, sM1, sM2 = 64, 8, 12, 16, 20
sNON = 68
PW = 3
sWO, sW1, sW2 = 52, 56, 60
vB = 19
A_hi = list(range(8, 16)); A_lo = list(range(20, 28))
vPOLL, vFLAG = 4, 5

class Track:
    def __init__(self, p): self.p = p; self.vm = []; self.lg = []
    def emit(self, x):
        if callable(x): x = x()
        tag = None
        if isinstance(x, tuple): x, tag = x
        if not x: return
        self.p(x)
        if x.startswith(("buffer_", "global_")): self.vm.append(tag)
        elif x.startswith("ds_"): self.lg.append(tag)
    def after(self, lst, tags):
        idx = [i for i, t in enumerate(lst) if t in tags]
        return len(lst) - 1 - max(idx) if idx else None
    def wait(self, vm=(), lg=()):
        def f():
            parts = []
            n = self.after(self.vm, vm) if vm else None
            if n is not None: parts.append(f"vmcnt({min(n, 63)})")
            n = self.after(self.lg, lg) if lg else None
            if n is not None: parts.append(f"lgkmcnt({min(n, 15)})")
            return "s_waitcnt " + " ".join(parts) if parts else ""
        return f
    def loads(self, lst):
        last = None
        for sal, ins, tag in lst:
            sl = [x for x in sal if not ("m0" in x and x == last)]
            for x in sl:
                self.p(x)
                if "m0" in x: last = x
            if sl and "m0" in sl[-1]: self.p("s_nop 0")
            self.emit((ins, tag))

def gemv_id(p, r, t1, t2):
    p(f"v_bfe_u32 v{t1}, v{r}, 1, 3")
    p(f"v_and_b32 v{t2}, 1, v{r}")
    p(f"v_lshl_add_u32 v{t1}, v{t2}, 3, v{t1}")
    p(f"v_and_b32 v{r}, 0xfffffff0, v{r}")
    p(f"v_add3_u32 v{r}, v{r}, v{t1}, 32")

def poll(p, label, stage, vpoll, vtmp, sleep=0):
    p("s_mov_b32 s31, 0")
    p(f"s_mov_b32 s30, {stage*256*128}")
    p(f"{label}_poll:")
    if sleep: p(f"s_sleep {sleep}")
    p(f"buffer_load_dword v{vtmp}, v{vpoll}, {s(sFL,4)}, s30 offen sc1")
    p("s_add_u32 s31, s31, 1")
    p("s_waitcnt vmcnt(0)")
    p(f"v_cmp_eq_u32 s[32:33], s{sNON}, v{vtmp}")
    p(f"s_cmp_gt_u32 s31, {1 << 18}")
    p(f"s_cbranch_scc1 {label}_x")
    p("s_cmp_eq_u64 s[32:33], -1")
    p(f"s_cbranch_scc0 {label}_poll")
    p(f"{label}_x:")

def sync(p, k, stage, window, vpoll, st_pub=None, st_done=None, pre_barrier=True, vflag=5, vval=6, vtmp=7, extra=None, lanes=None, sleep=0):
    if pre_barrier:
        stamp(p, f"e{k}")
        p("s_waitcnt vmcnt(0) lgkmcnt(0)")
        p("s_barrier")
    if st_pub is not None: stamp(p, st_pub)
    stamp(p, f"pub{k}")
    p(f"s_cmp_lg_u32 s{sWave}, {PW}")
    p(f"s_cbranch_scc1 L_sync{k}_a")
    p(f"v_mov_b32 v{vval}, s{sNON}")
    p("s_mov_b64 exec, 1")
    if lanes: p(f"s_mov_b32 exec_lo, s{lanes}")
    p(f"s_mov_b32 s30, {stage*256*128}")
    p(f"buffer_store_dword v{vval}, v{vflag}, {s(sFL,4)}, s30 offen sc1")
    p("s_mov_b64 exec, -1")
    p(f"L_sync{k}_a:")
    window(p)
    stamp(p, f"w{k}")
    p(f"s_cmp_lg_u32 s{sWave}, {PW}")
    p(f"s_cbranch_scc1 L_sync{k}_b")
    if extra: poll(p, f"L_sync{k}e", extra[0], extra[1], vtmp)
    poll(p, f"L_sync{k}", stage, vpoll, vtmp, sleep)
    p(f"L_sync{k}_b:")
    p("s_barrier")
    if st_done is not None: stamp(p, st_done)

def gemm_steps(tr, NS, NN, aread, bfrag, vA, vACC, extra_mem, barrier_at, bwait, valu=None):
    NG = 2*NN
    for st in range(NS):
        buf = st & 1
        mf = []
        for nt in range(NN):
            for mt in range(2):
                d_ = vACC + (nt*2+mt)*4
                mf.append(f"{MF} {v(d_,4)}, {v(vA[buf] + nt*4, 4)}, {bfrag(st, mt)}, {'0' if st == 0 else v(d_,4)}")
        sal = [[] for _ in range(NG)]; mem = [[] for _ in range(NG)]
        b = barrier_at(st)
        if b is not None:
            if b: sal[0].append(tr.wait(vm=b))
            sal[0].append("s_barrier")
        if st + 1 < NS:
            for r, x in enumerate(aread(st + 1)): mem[r].append((x, ("A", st + 1, r)))
        for g in range(3, NG - 1, 4):
            sal[g].append(tr.wait(lg=[("A", st, min(NG - 1, g + 4))]))
        if st + 1 < NS:
            sal[NG-1].append(tr.wait(vm=bwait(st + 1), lg=[("A", st + 1, 3)]))
        ex = extra_mem(st)
        pos = [1 + (k * (NG - 1)) // len(ex) + (1 if len(ex) <= (NG - 1) // 2 else 0) for k in range(len(ex))]
        for k, (sl, ins, tag) in enumerate(ex):
            g = pos[k]
            if k and pos[k-1] >= g - 1:
                mem[g] += sl + (["s_nop 0"] if sl and "m0" in sl[-1] else [])
            elif len(sl) == 2 and g >= 3 and not (k and pos[k-1] >= g - 2):
                sal[g-2].append(sl[0]); sal[g-1].append(sl[1])
            else:
                sal[g-1] += sl
            mem[g].append((ins, tag))
        val = [[] for _ in range(NG)]
        if valu:
            free = [g for g in range(NG) if g not in pos]
            for k, x in enumerate(valu(st)): val[free[k % len(free)] if k < len(free) else free[-1]].append(x)
        for g in range(NG):
            tr.emit(mf[g])
            for x in sal[g] + mem[g] + val[g]: tr.emit(x)

def RQ(lst):
    out = []; cur = []
    for sal, ins, tag in lst:
        if sal: cur = [x for x in sal if not x.startswith("s_cmp")][-2:] if not any(x.startswith("s_cselect") for x in sal) else [sal[-1]]
        out.append((sal, req(ins, cur), tag))
    return out

def wo_dma(T):
    return RQ([([f"s_add_u32 s{34+n}, s39, {(64*T + 16*n)*1024 - n*1024}", f"s_add_u32 m0, s43, {(T & 7)*SLOT}"],
             f"buffer_load_dwordx4 v18, {s(sWO,4)}, s{34+n} offen offset:{n*1024} lds", ("W", T)) for n in range(4)])

def attn_side_setup(p):
    p("v_lshrrev_b32 v28, 4, v1")
    p(f"s_lshl_b32 s42, s{sWave}, 2")
    p("v_add_u32 v28, s42, v28")
    p("v_and_b32 v29, 0xf0, v17")
    p("v_lshl_add_u32 v18, v28, 10, v29")
    p("s_bfe_u32 s39, s2, 0x20001")
    p("s_lshl_b32 s39, s39, 20")
    p("s_bfe_u32 s42, s2, 0x20003")
    p("s_lshl_b32 s42, s42, 8")
    p("s_add_u32 s39, s39, s42")

def gen_tail(p):
    tr = Track(p)
    WB = OPT.get("WB", 4)
    SC = lambda: "" if OPT.get("plainH") else " sc1"
    LDS_S = 9*SLOT
    p("s_lshl_b32 s30, s2, 7")
    p(f"v_mov_b32 v{vFLAG}, s30")
    vA = [32, 64]; vACC = 128
    vFO, vXO, vCO, vLW, vLR, vPOLL2, vPOLL3 = 96, 97, 98, 99, 100, 101, 102
    X0, G0, SBr, CBr = 104, 112, 192, 208
    A_x = list(range(224, 230))
    vD4 = [232, 233, 234, 235]; A4 = [[236+4*b_+d for d in range(4)] for b_ in range(3)]
    vPFo = 248
    def aread1(st):
        T, u = st >> 1, st & 1
        regs8 = A_lo if (T & 7) < 4 else A_hi
        return [f"ds_read_b64_tr_b16 {v(vA[st & 1] + nt*4 + hh*2, 2)}, v{regs8[nt]} offset:{(T & 3)*SLOT + (2*u + hh)*1024}" for nt in range(8) for hh in range(2)]
    def win1(p):
        p("v_and_b32 v2, 7, v1")
        p("s_and_b32 s30, s2, 0xc7")
        p("v_lshl_or_b32 v2, v2, 3, s30")
        p(f"v_lshlrev_b32 v{vPOLL}, 7, v2")
        p("v_add_u32 v28, 32, v1")
        gemv_id(p, 28, 29, 30)
        p("v_lshlrev_b32 v28, 7, v28")
        for d in range(8): p(f"v_subrev_u32 v{A_lo[d]}, 65536, v{A_hi[d]}")
        for r, x in enumerate(aread1(0)): tr.emit((x, ("A", 0, r)))
        p("s_and_b32 s30, s2, 1")
        p("s_lshl_b32 s30, s30, 3")
        p("s_lshr_b32 s31, s2, 5")
        p("s_add_u32 s30, s30, s31")
        p("s_lshl_b32 s30, s30, 3")
        p(f"s_lshl_b32 s31, s{sWave}, 1")
        p("s_add_u32 s40, s30, s31")
        p("s_bfe_u32 s41, s2, 0x20001")
        p("s_lshl_b32 s30, s40, 17")
        p("s_lshl_b32 s31, s41, 15")
        p("s_add_u32 s30, s30, s31")
        p(f"s_add_u32 s30, s30, {WS_O}")
        srd(p, sB, 46, 131072 + 32768, "s30")
        p("s_lshl_b32 s30, s41, 21")
        p("s_lshl_b32 s31, s40, 14")
        p("s_add_u32 s30, s30, s31")
        p("s_bfe_u32 s31, s2, 0x20003")
        p("s_lshl_b32 s31, s31, 12")
        p("s_add_u32 s30, s30, s31")
        p(f"s_add_u32 s30, s30, {WS_PART}")
        srd(p, sOUT, 46, 16384 + 4096, "s30")
        srd(p, sM1, 48, 2048*512*2)
        srd(p, sM2, 46, 3072*4, WS_MOD)
        p("s_and_b32 s30, s2, 7")
        p("s_lshl_b32 s30, s30, 4")
        p("s_lshr_b32 s31, s2, 4")
        p("s_add_u32 s30, s30, s31")
        p("s_bfe_u32 s31, s2, 0x10003")
        p("s_lshl_b32 s30, s30, 14")
        p("s_lshl_b32 s40, s31, 7")
        p("s_add_u32 s40, s40, s30")
        p("s_lshl_b32 s41, s31, 13")
        p("s_add_u32 s41, s41, s30")
        p("s_and_b32 s30, s2, 7")
        p("s_lshl_b32 s30, s30, 1")
        p("s_lshr_b32 s31, s2, 7")
        p("s_add_u32 s42, s30, s31")
        p("s_bfe_u32 s38, s2, 0x40003")
        p("s_mul_i32 s29, s38, 192")
        p("s_lshr_b32 s28, s2, 3")
        if OPT.get("w2t", 0) == 2:
            p("s_lshl_b32 s28, s28, 2")
            p(f"s_add_u32 s28, s28, s{sWave}")
            p("s_mul_i32 s28, s28, 11264")
        else:
            p("s_lshl_b32 s28, s28, 16")
        p(f"s_lshl_b32 s27, s{sWave}, 15")
        p("s_bfe_u32 s30, s2, 0x30003")
        p("s_lshl_b32 s30, s30, 7")
        p("s_add_u32 s27, s27, s30")
        p(f"s_add_u32 s25, s27, {11*131072}")
        p("s_lshr_b32 s30, s2, 6")
        p(f"s_mul_i32 s30, s30, {OPT.get('rot4', 3)*131072}")
        p("s_add_u32 s27, s27, s30")
        if OPT.get("walk", 1): p(";@WALK 1 012")
    geo = []
    G = geo.append
    G("v_lshlrev_b32 v2, 7, v1")
    if OPT.get("w2t", 0) == 2:
        G("v_mov_b32 v3, 0x40000000")
        G("v_cmp_gt_u32 s[32:33], 22, v1")
        G("v_nop")
        G("v_nop")
        G(f"v_cndmask_b32 v{vPFo}, v3, v2, s[32:33]")
    else:
        G(f"v_lshl_add_u32 v{vPFo}, s43, 2, v2")
    G("v_lshrrev_b32 v2, 4, v0")
    G("v_mul_u32_u24 v2, 2752, v2")
    G("v_and_b32 v3, 0xf0, v17")
    G("v_add_u32 v2, v2, v3")
    G("v_mov_b32 v28, 0x40000000")
    G("v_mov_b32 v29, 0xc0")
    G("v_cmp_le_u32 s[32:33], v29, v3")
    G("v_and_b32 v30, 7, v1")
    G("v_bfe_u32 v31, v1, 3, 2")
    G("v_cndmask_b32 v17, v2, v28, s[32:33]")
    for d in range(6): G(f"v_add_u32 v{A_x[d]}, 65536, v{A_hi[d]}")
    G("v_lshrrev_b32 v28, 5, v1")
    G("v_lshrrev_b32 v29, 6, v0")
    G(f"v_lshlrev_b32 v{vFO}, 10, v28")
    G(f"v_lshl_add_u32 v{vFO}, v31, 8, v{vFO}")
    G(f"v_lshl_add_u32 v{vFO}, v30, 4, v{vFO}")
    G(f"v_add_u32 v{vFO}, s43, v{vFO}")
    G(f"v_lshlrev_b32 v{vXO}, 10, v30")
    G(f"v_lshl_add_u32 v{vXO}, v28, 6, v{vXO}")
    G(f"v_lshl_add_u32 v{vXO}, v31, 3, v{vXO}")
    G(f"v_lshl_add_u32 v{vXO}, v29, 8, v{vXO}")
    G(f"v_lshlrev_b32 v{vCO}, 7, v28")
    G(f"v_lshl_add_u32 v{vCO}, v31, 4, v{vCO}")
    G(f"v_lshl_add_u32 v{vCO}, v29, 9, v{vCO}")
    G(f"v_lshlrev_b32 v{vLR}, 4, v30")
    G(f"v_add_u32 v{vLR}, {LDS_S}, v{vLR}")
    G(f"v_lshl_add_u32 v{vLW}, v29, 2, v{vLR}")
    G("v_bfe_u32 v2, v1, 2, 2")
    G("v_and_b32 v3, 3, v1")
    G("v_lshlrev_b32 v2, 1, v2")
    G("v_lshl_add_u32 v2, v3, 3, v2")
    G("v_lshrrev_b32 v3, 3, s42")
    G("v_add_u32 v2, v2, v3")
    G("v_and_b32 v3, 7, s42".replace("7, s42", "s42, 7").replace("v_and_b32 v3, s42, 7", "v_and_b32_e64 v3, s42, 7"))
    G("v_lshl_add_u32 v2, v3, 5, v2")
    G(f"v_lshlrev_b32 v{vPOLL2}, 7, v2")
    G("v_and_b32 v2, 15, v1")
    G("v_mov_b32 v3, 0x87")
    G("v_and_b32 v3, s2, v3")
    G("v_lshl_or_b32 v2, v2, 3, v3")
    G(f"v_lshlrev_b32 v{vPOLL3}, 7, v2")
    G("v_lshrrev_b32 v2, 4, v1")
    G("v_lshlrev_b32 v2, 1, v2")
    G("v_and_b32 v3, 7, v1")
    G("v_xor_b32 v2, v2, v3")
    G("v_lshrrev_b32 v3, 3, v1")
    G("v_lshlrev_b32 v3, 10, v3")
    G(f"v_lshl_add_u32 v{vD4[0]}, v2, 4, v3")
    for n in range(1, 4): G(f"v_add_u32 v{vD4[n]}, {n*(8192-1024)}, v{vD4[0]}")
    G("v_lshrrev_b32 v3, 2, v1")
    G("v_bfe_u32 v2, v3, 1, 2")
    G("v_lshlrev_b32 v3, 7, v3")
    G("v_lshl_add_u32 v3, v2, 5, v3")
    G("v_and_b32 v2, 3, v1")
    G("v_lshl_add_u32 v3, v2, 3, v3")
    G(f"v_add_u32 v{A4[0][0]}, s43, v3")
    for d in range(1, 4): G(f"v_xor_b32 v{A4[0][d]}, {d<<5}, v{A4[0][0]}")
    for b_ in (1, 2):
        for d in range(4): G(f"v_add_u32 v{A4[b_][d]}, {b_*65536}, v{A4[0][d]}")
    G("v_and_b32 v16, 48, v1")
    geo = [x.replace("v_lshrrev_b32 v3, 3, s42", "v_lshrrev_b32_e64 v3, 3, s42") for x in geo]

    sync(p, 1, 0, win1, vPOLL, st_pub=7, st_done=8, pre_barrier=False, extra=(4, 28))
    p(";@ZONE 1")
    def bl1(st):
        return RQ([([f"s_mov_b32 s{44+mt}, {mt*131072 + st*1024}"],
                 f"buffer_load_dwordx4 {a((st*2+mt)*4, 4)}, v{vB}, {s(sB,4)}, s{44+mt} offen" + ("" if OPT.get("plainO") else " sc1") + (" nt" if OPT.get("Ont") else ""), ("B", st)) for mt in range(2)])
    slot3 = lambda T: 8 if T == 0 else T - 1
    def w1_dma(T):
        return RQ([([f"s_add_u32 s{34+n}, s29, {(64*T + 16*n)*2752 - n*1024}", f"s_add_u32 m0, s43, {slot3(T)*SLOT}"],
                 f"buffer_load_dwordx4 v17, {s(sW1,4)}, s{34+n} offen offset:{n*1024} lds", ("W1", T)) for n in range(4)])
    NB = 2*WB
    NW1 = OPT.get("NW1", 6)
    for st in range(NB): tr.loads(bl1(st))
    tr.emit(tr.wait(vm=[("B", 0)], lg=[("A", 0, 3)]))
    stamp(p, "p1a")
    pre2 = []
    for i in range(2):
        for jh in range(2):
            pre2.append(([], f"buffer_load_dwordx2 {v(X0 + i*4 + jh*2, 2)}, v{vXO}, {s(sM1,4)}, s41 offen offset:{i*128 + jh*32}", "pre2"))
    for base, ch in ((G0, 2), (SBr, 3), (CBr, 4)):
        for i in range(2):
            for jh in range(2):
                pre2 += RQ([([f"s_mov_b32 s30, {ch*2048}"], f"buffer_load_dwordx4 {v(base + i*8 + jh*4, 4)}, v{vCO}, {s(sM2,4)}, s30 offen offset:{i*256 + jh*64} sc1", "pre2")])
    def ex1(st):
        out = bl1(st + NB) if st + NB < 32 else []
        T1 = (st - 1) >> 1
        d = []
        if st in (1, 2): d = wo_dma(7)
        elif st >= 3 and T1 - 1 < 8: d = wo_dma(T1 - 1 + 8)
        elif st >= 3 and T1 - 1 - 8 + 1 <= NW1 and st < 31: d = w1_dma(T1 - 1 - 8 + 1)
        if d: out = interleave(out, d[0:2] if (st & 1) else d[2:4])
        if OPT.get("w10", 1) and st in (17, 18): out += w1_dma(0)[2*(st-17):2*(st-17)+2]
        tp = [int(x) for x in str(OPT.get("w2st", "2.6.10.14")).split(".")]
        if OPT.get("w2t", 0) == 2 and st in tp:
            q = tp.index(st)
            out += RQ([([f"s_add_u32 s31, s28, {q*22*128}"], f"buffer_load_dword v{249+q}, v{vPFo}, {s(sW2,4)}, s31 offen", "pf")])
        k0 = st - 24
        if 0 <= k0: out += pre2[k0*2:(k0+1)*2]
        return out
    gemm_steps(tr, 32, 8, aread1, lambda st, mt: a((st*2+mt)*4, 4), vA, vACC, ex1,
               lambda st: ([("W", (st >> 1) + 1)] if (st & 1) else None), lambda st: [("B", st)],
               valu=lambda st: geo[st*10:(st+1)*10])
    assert len(geo) <= 10*10
    stamp(p, 9)
    p("s_nop 4")
    k = 0
    for s_ in range(4):
        for mt in range(2):
            p(f"s_mov_b32 s44, {mt*16384}")
            o = 32 + k*4; k += 1
            for t in range(2):
                src = vACC + ((2*s_+t)*2+mt)*4
                p(f"v_cvt_pk_bf16_f32 v{o+2*t}, v{src}, v{src+1}")
                p(f"v_cvt_pk_bf16_f32 v{o+2*t+1}, v{src+2}, v{src+3}")
            tr.emit(f"buffer_store_dwordx4 {v(o,4)}, v{vB}, {s(sOUT,4)}, s44 offen offset:{s_*1024} sc1")
    slot4 = lambda i: (7, 9, 8, 0, 1, 2, 3, 4, 5, 6, 7)[i]
    ROT = OPT.get("rot4", 3)
    def w2_dma(i):
        out = []
        for n in range(4):
            m0s = f"s_add_u32 m0, s43, {slot4(i)*SLOT}"
            adv = []
            if n == 0 and i > 0:
                adv = [f"s_add_u32 s27, s27, 131072\ns_cmp_ge_u32 s27, s25\ns_cselect_b32 s34, {11*131072}, 0\ns_sub_u32 s27, s27, s34"]
            out.append((adv + [m0s], req(f"buffer_load_dwordx4 v{vD4[n]}, {s(sW2,4)}, s27 offen offset:{n*1024} lds", [m0s]), ("W2", i)))
        return out
    def win2(p):
        srd(p, sB, 46, 4*2048*512*2, WS_PART)
        srd(p, sOUT, 46, 2048*512*2, WS_H2)
        srd(p, sM1, 46, 2048*512*2, WS_X1)
        for kq in range(1, 4): p(f"s_add_u32 s{33+kq}, s40, {kq << 21}")
    tr.vm = []; tr.lg = []
    sync(p, 2, 1, win2, vPOLL2, st_pub=10, st_done=11)
    PP = 32
    for kq in range(4):
        for i in range(2):
            tr.emit((f"buffer_load_dwordx4 {v(PP + kq*8 + i*4, 4)}, v{vFO}, {s(sB,4)}, s{33+kq if kq else 40} offen offset:{i*2048} sc1", ("P", kq)))
    w1q = []
    for T in ([] if OPT.get("w10", 1) else [0]) + list(range(NW1 + 1, 8)): w1q += w1_dma(T)
    n0 = min(len(w1q), OPT.get("W1N0", 16))
    tr.loads(w1q[:n0]); w1q = w1q[n0:]
    def drip(n=1):
        nonlocal w1q
        tr.loads(w1q[:n]); w1q = w1q[n:]
    if OPT.get("w2t", 0) == 1:
        p("s_add_u32 s31, s28, 8192")
        tr.emit(f"buffer_load_dword v249, v{vPFo}, {s(sW2,4)}, s28 offen")
        tr.emit(f"buffer_load_dword v250, v{vPFo}, {s(sW2,4)}, s31 offen")
    if OPT.get("w20p2", 1): tr.loads(w2_dma(0))
    F = 64; T_ = 80; XF = 128
    for j in range(8):
        p(f"v_lshlrev_b32 v{XF+2*j}, 16, v{X0+j}")
        p(f"v_and_b32 v{XF+2*j+1}, 0xffff0000, v{X0+j}")
    tr.emit(tr.wait(vm=[("P", 0)]))
    stamp(p, "p2a")
    for j in range(8):
        p(f"v_lshlrev_b32 v{F+2*j}, 16, v{PP+j}")
        p(f"v_and_b32 v{F+2*j+1}, 0xffff0000, v{PP+j}")
    for kq in (1, 2, 3):
        tr.emit(tr.wait(vm=[("P", kq)]))
        for j in range(8):
            p(f"v_lshlrev_b32 v{T_+2*(j&1)}, 16, v{PP+8*kq+j}")
            p(f"v_and_b32 v{T_+1+2*(j&1)}, 0xffff0000, v{PP+8*kq+j}")
            p(f"v_add_f32 v{F+2*j}, v{F+2*j}, v{T_+2*(j&1)}")
            p(f"v_add_f32 v{F+2*j+1}, v{F+2*j+1}, v{T_+1+2*(j&1)}")
            if j & 1: drip()
    for i in range(16): p(f"v_fma_f32 v{F+i}, v{F+i}, v{G0+i}, v{XF+i}")
    drip(2)
    for j in range(8): p(f"v_cvt_pk_bf16_f32 v{X0+j}, v{F+2*j}, v{F+2*j+1}")
    for j in range(8):
        p(f"v_lshlrev_b32 v{F+2*j}, 16, v{X0+j}")
        p(f"v_and_b32 v{F+2*j+1}, 0xffff0000, v{X0+j}")
    for i in range(2):
        tr.emit(f"buffer_store_dwordx4 {v(X0+4*i, 4)}, v{vFO}, {s(sM1,4)}, s40 offen offset:{2048*i}" + SC())
    drip(99)
    stamp(p, "p2b")
    ln_stats(p, F, 16, 32, vLW, vLR, 0, 84, 85, reduce=row_reduce8)
    stamp(p, "p2c")
    for i in range(16): p(f"v_sub_f32 v{F+i}, v{F+i}, v84")
    for i in range(16): p(f"v_mul_f32 v{F+i}, v{F+i}, v85")
    for i in range(16): p(f"v_fma_f32 v{F+i}, v{F+i}, v{CBr+i}, v{SBr+i}")
    for j in range(8): p(f"v_cvt_pk_bf16_f32 v{88+j}, v{F+2*j}, v{F+2*j+1}")
    for i in range(2):
        tr.emit(f"buffer_store_dwordx4 {v(88+4*i, 4)}, v{vFO}, {s(sOUT,4)}, s40 offen offset:{2048*i}" + SC())
    def aread3(st):
        T, u = st >> 1, st & 1
        sl = slot3(T)
        regs8 = A_x if sl == 8 else A_lo if sl < 4 else A_hi
        return [f"ds_read_b64_tr_b16 {v(vA[st & 1] + nt*4 + hh*2, 2)}, v{regs8[nt]} offset:{(sl & 3)*SLOT + (2*u + hh)*1024}" for nt in range(6) for hh in range(2)]
    def win3(p):
        for r, x in enumerate(aread3(0)): tr.emit((x, ("A", 0, r)))
        p("s_lshl_b32 s30, s42, 3")
        p(f"s_lshl_b32 s31, s{sWave}, 1")
        p("s_add_u32 s40, s30, s31")
        p("s_lshl_b32 s30, s40, 14")
        p(f"s_add_u32 s30, s30, {WS_H2}")
        srd(p, sB, 46, 32768, "s30")
        p(f"s_mul_i32 s30, s40, {43*1024}")
        p("s_mul_i32 s31, s38, 3072")
        p("s_add_u32 s30, s30, s31")
        p(f"s_add_u32 s30, s30, {WS_U}")
        srd(p, sOUT, 46, 43*1024 + 3072, "s30")
        p("s_cmp_eq_u32 s38, 14")
        p("s_cselect_b32 s29, 1, 3")
        p("s_cmp_eq_u32 s38, 15")
        p("s_cselect_b32 s29, 0, s29")
        p("s_lshl_b32 s30, s42, 1")
        p("s_bfe_u32 s31, s2, 0x10006")
        p("s_add_u32 s39, s30, s31")
        p("s_lshl_b32 s40, s39, 2")
        p(f"s_add_u32 s40, s40, s{sWave}")
        p("s_lshl_b32 s40, s40, 14")
        p("s_bfe_u32 s41, s2, 0x30003")
        p("s_lshl_b32 s28, s41, 11")
        p("s_add_u32 s28, s28, s40")
        p("s_lshl_b32 s26, s41, 8")
        p(f"s_add_u32 s26, s26, {5*2048}")
    tr.vm = []; tr.lg = []
    sync(p, 3, 2, win3, vPOLL3, st_done=12)
    X1r, GBr = 192, 200
    def bl3(st):
        return RQ([([f"s_mov_b32 s{36+mt}, {mt*16384 + st*1024}"],
                 f"buffer_load_dwordx4 {a((st*2+mt)*4, 4)}, v{vB}, {s(sB,4)}, s{36+mt} offen" + SC(), ("B", st)) for mt in range(2)])
    NB3 = OPT.get("NB3", 6)
    for st in range(NB3): tr.loads(bl3(st))
    tr.emit(tr.wait(vm=[("B", 0)], lg=[("A", 0, 3)]))
    stamp(p, "p3a")
    BR = OPT.get("BR3", 2)
    q3 = []
    for i in range(0 if not OPT.get("w20p2", 1) else 1, 9):
        for it in w2_dma(i): q3.append((0 if i < 2 else 2*(i - 1), it))
    def ex3(st):
        out = []
        for b_ in range(NB3 + st*BR, min(16, NB3 + (st+1)*BR)): out += bl3(b_)
        n = 0
        lim = OPT.get("D3", 3) if st < 14 else 4
        while q3 and q3[0][0] <= st and len(out) < max(lim, 1) and NB3 + st*BR >= 16 - BR:
            out.append(q3.pop(0)[1])
        return out
    gemm_steps(tr, 16, 6, aread3, lambda st, mt: a((st*2+mt)*4, 4), vA, vACC, ex3,
               lambda st: ([] if st >= 2 and st % 2 == 0 else None), lambda st: [("B", st)])
    p("s_barrier")
    stamp(p, 13)
    epi = [([], f"buffer_load_dwordx4 {v(X1r,4)}, v{vB}, {s(sM1,4)}, s28 offen" + SC(), "epi"),
           ([], f"buffer_load_dwordx4 {v(X1r+4,4)}, v{vB}, {s(sM1,4)}, s28 offen offset:1024" + SC(), "epi")]
    epi += [([], f"buffer_load_dwordx4 {v(GBr+nt*4,4)}, v16, {s(sM2,4)}, s26 offen offset:{nt*64} sc1", "epi") for nt in range(4)]
    epi = [x[1] for x in q3] + w2_dma(9) + epi
    print("P3 epilogue loads:", len(epi))
    vA4 = [32, 48]; vACC4 = 64
    def aread4(i):
        sl = slot4(i)
        return [f"ds_read_b64_tr_b16 {v(vA4[i & 1] + nt*4 + hh*2, 2)}, v{A4[sl >> 2][nt]} offset:{(sl & 3)*SLOT + hh*2048}" for nt in range(4) for hh in range(2)]
    tr.loads(epi[:4]); epi = epi[4:]
    k = 0
    for s_ in range(3):
        for mt in range(2):
            src = [vACC + ((2*s_+t)*2+mt)*4 + r for t in range(2) for r in range(4)]
            t_ = 104 + (k & 1)*8; o = 76 + (k & 3)*4; k += 1
            for i in range(8): p(f"v_mul_f32 v{t_+i}, {hexf(-LOG2E)}, v{src[i]}")
            tr.loads(epi[:2]); epi = epi[2:]
            for i in range(8): p(f"v_exp_f32 v{t_+i}, v{t_+i}")
            tr.loads(epi[:1]); epi = epi[1:]
            for i in range(8): p(f"v_add_f32 v{t_+i}, 1.0, v{t_+i}")
            for i in range(8): p(f"v_rcp_f32 v{t_+i}, v{t_+i}")
            tr.loads(epi[:1]); epi = epi[1:]
            p(f"s_cmp_gt_u32 s29, {s_}")
            p(f"s_cselect_b32 s44, {mt*43*1024}, 2.0")
            for i in range(8): p(f"v_mul_f32 v{t_+i}, v{t_+i}, v{src[i]}")
            for i in range(4): p(f"v_cvt_pk_bf16_f32 v{o+i}, v{t_+2*i}, v{t_+2*i+1}")
            tr.emit(f"buffer_store_dwordx4 {v(o,4)}, v{vB}, {s(sOUT,4)}, s44 offen offset:{s_*1024}" + SC())
    assert not epi
    def win4(p):
        for r, x in enumerate(aread4(0)): tr.emit((x, ("A", 0, r)))
        p(f"s_mul_i32 s30, s39, {4*43*1024}")
        p(f"s_add_u32 s30, s30, {WS_U}")
        srd(p, sB, 46, 4*43*1024, "s30")
        srd(p, sOUT, 50, 2048*512*2)
        p(f"s_lshl_b32 s39, s{sWave}, 10")
        p(f"s_add_u32 s45, s39, {11*4096}")
        p("s_lshr_b32 s30, s2, 6")
        p(f"s_mul_i32 s30, s30, {ROT*4096}")
        p("s_add_u32 s39, s39, s30")
        p("s_lshl_b32 s30, s41, 7")
        p("s_add_u32 s40, s40, s30")
    tr.vm = []; tr.lg = []
    sync(p, 4, 3, win4, vPOLL3, st_done=14)
    NS = 11
    def bl4(i):
        out = []
        for mt in range(4):
            pre_ = []
            if mt == 0:
                adv = f"s_add_u32 s39, s39, 4096\ns_cmp_ge_u32 s39, s45\ns_cselect_b32 s44, {11*4096}, 0\ns_sub_u32 s39, s39, s44\n" if i > 0 else ""
                pre_ = [adv + f"s_cmp_eq_u32 s39, {43*1024}\ns_cselect_b32 s44, 2.0, s39"]
            sal = [f"s_add_u32 s{35+mt}, s44, {mt*43*1024}"]
            out.append((pre_ + sal, req(f"buffer_load_dwordx4 {a((i*4+mt)*4, 4)}, v{vB}, {s(sB,4)}, s{35+mt} offen" + SC(), sal), ("B", i)))
        return out
    W4 = OPT.get("W4", 3)
    for i in range(W4): tr.loads(bl4(i))
    tr.emit(tr.wait(vm=[("B", 0)], lg=[("A", 0, 7)]))
    stamp(p, "p4a")
    for i in range(NS):
        mf = []
        for nt in range(4):
            for mt in range(4):
                d_ = vACC4 + (mt*4+nt)*4
                mf.append(f"{MF} {v(d_,4)}, {v(vA4[i & 1] + nt*4, 4)}, {a((i*4+mt)*4, 4)}, {'0' if i == 0 else v(d_,4)}")
        sal = [[] for _ in range(16)]; mem = [[] for _ in range(16)]
        if i + 1 < NS:
            for r, x in enumerate(aread4(i + 1)): mem[(0, 1, 2, 4, 5, 6, 8, 9)[r]].append((x, ("A", i + 1, r)))
            sal[15].append(tr.wait(vm=[("B", i + 1), ("W2", i + 2)], lg=[("A", i + 1, 7)]))
        ld = bl4(i + W4) if i + W4 < NS else []
        for k_, (sl, ins, tag) in enumerate(ld):
            g = 3 + 4*k_
            sal[g-1] += sl
            mem[g].append((ins, tag))
        if i < 4:
            sl, ins, tag = w2_dma(10)[i]
            sal[12] += sl; mem[13].append((ins, tag))
        for g in range(16):
            tr.emit(mf[g])
            for x in sal[g] + mem[g]: tr.emit(x)
    stamp(p, "p4b")
    p("s_barrier")
    p(f"s_lshl_b32 s30, s{sWave}, 14")
    p(f"v_add_u32 v2, s30, v{vB}")
    p(f"v_add_u32 v3, s43, v{vB}")
    p("s_nop 3")
    for t in range(16): p(f"ds_write_b128 v2, {v(vACC4 + t*4, 4)} offset:{t*1024}")
    XF = 128
    for j in range(8):
        p(f"v_lshlrev_b32 v{XF+2*j}, 16, v{X1r+j}")
        p(f"v_and_b32 v{XF+2*j+1}, 0xffff0000, v{X1r+j}")
    p("s_waitcnt lgkmcnt(0)")
    p("s_barrier")
    for src in range(4):
        for nt in range(4):
            p(f"ds_read_b128 {v(vACC4 + (src*4+nt)*4, 4)}, v3 offset:{src*16384 + nt*1024}")
    p("v_and_b32 v2, 15, v1")
    p("v_lshlrev_b32 v2, 10, v2")
    p("v_add_u32 v2, v2, v16")
    stamp(p, "p4c")
    p("s_waitcnt lgkmcnt(8)")
    for i in range(16): p(f"v_add_f32 v{vACC4+i}, v{vACC4+i}, v{vACC4+16+i}")
    p("s_waitcnt lgkmcnt(0)")
    for i in range(16): p(f"v_add_f32 v{vACC4+32+i}, v{vACC4+32+i}, v{vACC4+48+i}")
    for i in range(16): p(f"v_add_f32 v{vACC4+i}, v{vACC4+i}, v{vACC4+32+i}")
    for i in range(16): p(f"v_fma_f32 v{vACC4+i}, v{vACC4+i}, v{GBr+i}, v{XF+i}")
    for j in range(8): p(f"v_cvt_pk_bf16_f32 v{40+j}, v{vACC4+2*j}, v{vACC4+2*j+1}")
    p("s_nop 1")
    for sw in ("v_permlane32_swap_b32", "v_permlane16_swap_b32"):
        for s_ in range(2):
            p(f"{sw} v{40+4*s_}, v{42+4*s_}")
            p(f"{sw} v{41+4*s_}, v{43+4*s_}")
    for s_ in range(2):
        p(f"buffer_store_dwordx4 {v(40+4*s_,4)}, v2, {s(sOUT,4)}, s40 offen offset:{s_*64}" + OPT.get("outmod", "").replace("_", " "))
```

```python
from common import *

def bf16_round(p, dst, src):
    p(f"v_cvt_pk_bf16_f32 v{dst}, v{src}, v{src}")
    p(f"v_and_b32 v{dst}, 0xffff0000, v{dst}")

def ln_stats(p, xr, n, t0, ldsaddr_w, ldsaddr_r, ldsoff, out_mean, out_rden, reduce=None):
    from k_pre import bf16_round
    acc = [t0, t0+1, t0+2, t0+3]
    for k in range(4): p(f"v_add_f32 v{acc[k]}, v{xr+k}, v{xr+4+k}")
    for i in range(8, n): p(f"v_add_f32 v{acc[i%4]}, v{acc[i%4]}, v{xr+i}")
    p(f"v_add_f32 v{t0}, v{t0}, v{t0+1}")
    p(f"v_add_f32 v{t0+2}, v{t0+2}, v{t0+3}")
    p(f"v_add_f32 v{t0}, v{t0}, v{t0+2}")
    (reduce(p, t0, t0+1) if reduce else xlane_reduce(p, "v_add_f32", [t0], [t0+1]))
    p(f"ds_write_b32 v{ldsaddr_w}, v{t0} offset:{ldsoff}")
    p("s_waitcnt lgkmcnt(0)")
    p("s_barrier")
    p(f"ds_read_b128 v[{t0+4}:{t0+7}], v{ldsaddr_r} offset:{ldsoff}")
    p("s_waitcnt lgkmcnt(0)")
    p(f"v_add_f32 v{t0+4}, v{t0+4}, v{t0+5}")
    p(f"v_add_f32 v{t0+6}, v{t0+6}, v{t0+7}")
    p(f"v_add_f32 v{t0+4}, v{t0+4}, v{t0+6}")
    p(f"v_mul_f32 v{out_mean}, {hexf(1.0/512)}, v{t0+4}")
    for k in range(4): p(f"v_mov_b32 v{acc[k]}, 0")
    for i in range(n):
        tt = t0 + 4 + (i % 4)
        p(f"v_sub_f32 v{tt}, v{xr+i}, v{out_mean}")
        p(f"v_fmac_f32 v{acc[i%4]}, v{tt}, v{tt}")
    p(f"v_add_f32 v{t0}, v{t0}, v{t0+1}")
    p(f"v_add_f32 v{t0+2}, v{t0+2}, v{t0+3}")
    p(f"v_add_f32 v{t0}, v{t0}, v{t0+2}")
    (reduce(p, t0, t0+1) if reduce else xlane_reduce(p, "v_add_f32", [t0], [t0+1]))
    p(f"ds_write_b32 v{ldsaddr_w}, v{t0} offset:{ldsoff+256}")
    p("s_waitcnt lgkmcnt(0)")
    p("s_barrier")
    p(f"ds_read_b128 v[{t0+4}:{t0+7}], v{ldsaddr_r} offset:{ldsoff+256}")
    p("s_waitcnt lgkmcnt(0)")
    p(f"v_add_f32 v{t0+4}, v{t0+4}, v{t0+5}")
    p(f"v_add_f32 v{t0+6}, v{t0+6}, v{t0+7}")
    p(f"v_add_f32 v{t0+4}, v{t0+4}, v{t0+6}")
    p(f"v_mul_f32 v{t0+4}, {hexf(1.0/512)}, v{t0+4}")
    bf16_round(p, t0+4, t0+4)
    p(f"v_add_f32 v{t0+4}, {hexf(1e-5)}, v{t0+4}")
    bf16_round(p, t0+4, t0+4)
    p(f"v_sqrt_f32 v{t0+4}, v{t0+4}")
    p("s_nop 0")
    bf16_round(p, t0+4, t0+4)
    p(f"v_rcp_f32 v{out_rden}, v{t0+4}")
    bf16_round(p, out_mean, out_mean)


def gen_pre(p):
    L = "k_pre_kernel"
    header(p, L)
    p("s_cmp_ge_u32 s2, 256")
    p("s_cbranch_scc1 L_pre_end")
    stamp_begin(p)
    p(f"s_load_dwordx4 s[4:7], s[0:1], {KA_C}")
    p(f"s_load_dwordx2 s[8:9], s[0:1], {KA_WS}")
    p(f"s_load_dwordx8 s[36:43], s[0:1], {KA_X}")
    p("s_and_b32 s30, s2, 7")
    p("s_lshr_b32 s31, s2, 3")
    if OPT.get("wsb"):
        p("s_waitcnt lgkmcnt(0)")
        p(f"s_add_u32 s8, s8, {OPT['wsb'] << 20}")
        p("s_addc_u32 s9, s9, 0")
    p("s_cmp_lt_u32 s31, 16")
    p("s_cbranch_scc1 L_pre_ln")
    p("s_cmp_ge_u32 s31, 28")
    p("s_cbranch_scc1 L_pre_pf")
    p("s_mul_i32 s29, s30, 12")
    p("s_add_u32 s29, s29, s31")
    p("s_sub_u32 s29, s29, 16")
    p("v_lshrrev_b32 v1, 2, v0")
    p("v_and_b32 v2, 3, v0")
    p("v_mul_u32_u24 v3, 6144, v1")
    p("v_lshl_add_u32 v3, v2, 4, v3")
    p("v_lshlrev_b32 v4, 1, v1")
    p("s_lshl_b32 s24, s29, 6")
    p("s_waitcnt lgkmcnt(0)")
    srd(p, 16, 6, 512*3072*2)
    srd(p, 12, 4, 1024)
    for i in range(8):
        p(f"buffer_load_dwordx4 v[{16+4*i}:{19+4*i}], v3, s[16:19], s24 offen")
        if i < 7: p(f"s_add_u32 s24, s24, {64*6144}")
    for i in range(8):
        p(f"buffer_load_ushort v{8+i}, v4, s[12:15], 0 offen offset:{128*i}")
    srd(p, 20, 8, 3072*4, WS_MOD)
    for i in range(8): p(f"v_mov_b32 v{48+i}, 0")
    p("v_lshrrev_b32 v5, 4, v0")
    p("v_lshlrev_b32 v5, 7, v5")
    p("v_lshl_add_u32 v5, v2, 5, v5")
    p("v_and_b32 v6, 15, v0")
    p("s_waitcnt vmcnt(0)")
    for i in range(8): p(f"v_lshlrev_b32 v{8+i}, 16, v{8+i}")
    for i in range(8): p(f"v_mul_f32 v{56+i}, {hexf(-LOG2E)}, v{8+i}")
    for i in range(8): p(f"v_exp_f32 v{56+i}, v{56+i}")
    for i in range(8): p(f"v_add_f32 v{56+i}, 1.0, v{56+i}")
    for i in range(8): p(f"v_rcp_f32 v{56+i}, v{56+i}")
    for i in range(8): p(f"v_mul_f32 v{8+i}, v{8+i}, v{56+i}")
    for i in range(8): bf16_round(p, 8+i, 8+i)
    for i in range(8):
        for d in range(4):
            r = 16 + 4*i + d
            p(f"v_lshlrev_b32 v56, 16, v{r}")
            p(f"v_and_b32 v57, 0xffff0000, v{r}")
            p(f"v_fmac_f32 v{48+2*d}, v{8+i}, v56")
            p(f"v_fmac_f32 v{49+2*d}, v{8+i}, v57")
    p("v_cmp_gt_u32 s[26:27], 4, v6")
    p("s_nop 0")
    for rot in (4, 8):
        for i in range(8): p(f"v_add_f32_dpp v{48+i}, v{48+i}, v{48+i} row_ror:{rot} row_mask:0xf bank_mask:0xf")
    p("s_and_saveexec_b64 s[26:27], s[26:27]")
    p("ds_write_b128 v5, v[48:51]")
    p("ds_write_b128 v5, v[52:55] offset:16")
    p("s_mov_b64 exec, s[26:27]")
    p("v_cmp_gt_u32 s[26:27], 32, v0")
    p("v_lshlrev_b32 v5, 2, v0")
    cs = LOG2E / (128 ** 0.5)
    p("s_lshr_b32 s25, s29, 4")
    p("s_cmp_eq_u32 s25, 1")
    p("s_cselect_b32 s28, 1.0, 0")
    p("s_cmp_eq_u32 s25, 4")
    p("s_cselect_b32 s28, 1.0, s28")
    p("s_cmp_lt_u32 s25, 2")
    p(f"s_cselect_b32 s25, {hexf(cs)}, 1.0")
    p("s_lshl_b32 s24, s29, 7")
    p("s_waitcnt lgkmcnt(0)")
    p("s_barrier")
    p("s_and_saveexec_b64 s[26:27], s[26:27]")
    p("s_cbranch_execz L_pre_done")
    for i in range(16): p(f"ds_read_b32 v{16+i}, v5 offset:{128*i}")
    p("s_waitcnt lgkmcnt(0)")
    for st in (8, 4, 2, 1):
        for i in range(st): p(f"v_add_f32 v{16+i}, v{16+i}, v{16+i+st}")
    bf16_round(p, 16, 16)
    p("v_add_f32 v16, s28, v16")
    bf16_round(p, 16, 16)
    p("v_mul_f32 v16, s25, v16")
    p("buffer_store_dword v16, v5, s[20:23], s24 offen")
    p("s_branch L_pre_done")
    p("L_pre_pf:")
    p("v_lshrrev_b32 v1, 6, v0")
    p("s_sub_u32 s29, s31, 28")
    p("s_lshl_b32 s29, s29, 2")
    p("v_add_u32 v1, s29, v1")
    p("s_lshr_b32 s29, s30, 1")
    p("s_lshl_b32 s29, s29, 3")
    p("v_lshrrev_b32 v2, 1, v1")
    p("v_add_u32 v2, s29, v2")
    p("v_lshlrev_b32 v2, 19, v2")
    p("v_and_b32 v3, 63, v0")
    p("v_lshl_add_u32 v2, v3, 7, v2")
    p("v_and_b32 v1, 1, v1")
    p("v_lshl_add_u32 v3, v1, 14, v2")
    p("v_lshl_add_u32 v4, v1, 13, v2")
    p("s_waitcnt lgkmcnt(0)")
    srd(p, 12, 38, 32*524288)
    srd(p, 16, 40, 32*524288)
    p("s_mov_b32 s24, 8192")
    p("buffer_load_dword v8, v3, s[12:15], 0 offen")
    p("buffer_load_dword v9, v3, s[12:15], s24 offen")
    p("buffer_load_dword v10, v4, s[16:19], 0 offen")
    p("s_waitcnt vmcnt(0)")
    p("s_branch L_pre_done")
    p("L_pre_ln:")
    p("s_and_b32 s28, s30, 1")
    p("s_lshl_b32 s28, s28, 6")
    p("s_lshr_b32 s29, s30, 1")
    p("s_lshl_b32 s27, s29, 4")
    p("s_add_u32 s28, s28, s27")
    p("s_add_u32 s28, s28, s31")
    p("v_and_b32 v1, 15, v0")
    p("v_bfe_u32 v2, v0, 4, 2")
    p("v_lshrrev_b32 v3, 6, v0")
    p("v_lshlrev_b32 v4, 10, v1")
    p("v_lshl_add_u32 v4, v3, 8, v4")
    p("v_lshl_add_u32 v4, v2, 5, v4")
    p("s_lshl_b32 s24, s28, 14")
    p("s_waitcnt lgkmcnt(0)")
    srd(p, 12, 36, 2048*512*2)
    for f in range(4):
        p(f"buffer_load_dwordx4 v[{16+4*f}:{19+4*f}], v4, s[12:15], s24 offen offset:{(f>>1)*128 + (f&1)*16}")
    srd(p, 20, 8, 2048*512*2, WS_H)
    srd(p, 16, 42, 512*4096*2)
    p("v_and_b32 v6, 63, v0")
    p("s_lshl_b32 s27, s31, 2")
    p("v_add_u32 v12, s27, v3")
    p("v_lshlrev_b32 v12, 3, v12")
    p("v_add_u32 v12, v12, v2")
    p("v_lshlrev_b32 v12, 13, v12")
    p("v_lshl_add_u32 v12, v1, 7, v12")
    p("s_lshl_b32 s26, s29, 11")
    p("s_add_u32 s27, s26, 32768")
    p("v_lshlrev_b32 v6, 4, v6")
    p("v_lshl_add_u32 v6, v3, 12, v6")
    p("v_lshlrev_b32 v8, 4, v1")
    p("v_lshl_add_u32 v7, v3, 2, v8")
    wqpf = OPT.get("wqpf", 1)
    if wqpf == 1: p("s_waitcnt vmcnt(0)")
    if wqpf:
        p("buffer_load_dword v13, v12, s[16:19], s26 offen")
        p("buffer_load_dword v14, v12, s[16:19], s27 offen")
    if wqpf == 2: p("s_waitcnt vmcnt(2)")
    if wqpf == 0: p("s_waitcnt vmcnt(0)")
    for r in range(16):
        p(f"v_lshlrev_b32 v{32+2*r}, 16, v{16+r}")
        p(f"v_and_b32 v{33+2*r}, 0xffff0000, v{16+r}")
    ln_stats(p, 32, 32, 16, 7, 8, 0, 10, 11)
    for i in range(32):
        p(f"v_sub_f32 v{32+i}, v{32+i}, v10")
        p(f"v_mul_f32 v{32+i}, v{32+i}, v11")
    for r in range(16):
        p(f"v_cvt_pk_f16_f32 v{16+r}, v{32+2*r}, v{33+2*r}")
    for f in range(4):
        p(f"buffer_store_dwordx4 v[{16+4*f}:{19+4*f}], v6, s[20:23], s24 offen offset:{1024*f}")
    p("L_pre_done:")
    p("s_mov_b64 exec, -1")
    p("v_cmp_gt_u32 s[26:27], 4, v0")
    p("s_and_saveexec_b64 s[26:27], s[26:27]")
    p("s_cbranch_execz L_pre_noflag")
    srd(p, 44, 8, 4*256*128, WS_FLAG)
    p("v_lshlrev_b32 v60, 15, v0")
    p("v_mov_b32 v61, 0")
    p("s_lshl_b32 s24, s2, 7")
    p("buffer_store_dword v61, v60, s[44:47], s24 offen")
    p("L_pre_noflag:")
    stamp_end(p, 0)
    p("L_pre_end:")
    p("s_endpgm")
    return L, descriptor(L, 64, 48), "grid=(256,1,1) block=(256,1,1) lds=2048"
```

```python
import sys
from common import *
import k_pre, k_attn, k_tail

def build(opts={}):
    import common
    common.STAMPS = int(opts.get("stamps", 0))
    common.STAMP_SET = opts["set"].split(",") if "set" in opts else None
    common.OPT.clear(); common.OPT.update(opts)
    launches, descs, bodies, errs = [], [], [], []
    p = Prog()
    L, d, geo = k_attn.gen_attn(p, mfmasum=opts.get("mfmasum", 1))
    launches.append(f"; @launch kernel={L} {geo}" if opts.get("list", 1) else f"; @launch {geo}")
    descs.append(d); bodies.append(p.text())
    nonpoll = tuple(f"L_sync{k}_{x}" for k in range(5) for x in "ab")
    for nm, tk in (("loop", ("L_rd_gemv",)), ("gemv3", ("L_attn_tail", "L_e3")), ("ln0", ("L_rb_ln", "L_rd_ln", "L_attn_tail") + nonpoll),
                   ("idle2", ("L_rb_idle", "L_rb_touch", "L_rd_idle", "L_attn_tail")), ("gemv", ("L_rb_crit", "L_rd_gemv", "L_rd_crit", "L_attn_tail", "L_e3")), ("idle", ("L_rb_idle", "L_rd_idle", "L_e3", "L_attn_tail", "L_attn_fallback"))):
        errs += check(linearize(p.items, start=L, taken=tk), nm)
    if opts.get("nopf") or opts.get("nopb"):
        p = Prog(); header(p, "k_nop_kernel"); p("s_endpgm")
        bodies.append(p.text()); descs.append(descriptor("k_nop_kernel", 8, 16))
        nl = "; @launch kernel=k_nop_kernel grid=(256,1,1) block=(64,1,1) lds=0"
        launches = [nl]*opts.get("nopf", 0) + launches + [nl]*opts.get("nopb", 0)
    ref = open(f"cdna_kernels/{NAME}.s.ref").read().split("\n")
    head = [l for l in ref if l.startswith("; Kernarg") or l.startswith(";   offset")]
    out = "\n".join(head + launches) + "\n"
    out += '.amdgcn_target "amdgcn-amd-amdhsa--gfx950"\n.text\n' + "".join(bodies)
    out += '.section .rodata,"a"\n' + "".join(descs)
    return out, errs

if __name__ == "__main__":
    opts = {}
    outp = f"cdna_kernels/{NAME}.s"
    for a_ in sys.argv[1:]:
        if a_.startswith("-o"): outp = a_[2:]
        else:
            k, _, val = a_.partition("=")
            opts[k] = (int(val) if val.lstrip('-').isdigit() else val) if val else True
    out, errs = build(opts)
    seen = set()
    for e in errs:
        if e not in seen:
            if len(seen) < 12: print(e)
            seen.add(e)
    open(outp, "w").write(out)
    print("wrote", outp, len(out), "bytes;", len(seen), "checker errors")
```

```python
import gen_mb2 as g
r = g.r; M16 = g.M16
pre = []
for i in range(32):
    pre += [f"v_fma_f32 v8, v{160+2*i}, 2.0, -4.0", f"v_fma_f32 v9, v{161+2*i}, 2.0, -4.0", "v_exp_f32 v8, v8", "v_exp_f32 v9, v9", "s_nop 0", f"v_cvt_pk_bf16_f32 v{128+i}, v8, v9"]
def pv(swap, order, chain):
    o_ = []
    if not chain:
        seq = [(ks, dt, qt) for ks in range(2) for dt in range(8) for qt in range(4)] if order == "d" else [(ks, dt, qt) for ks in range(2) for qt in range(4) for dt in range(8)]
    else:
        seq = [(ks, dt, qt) for dt in range(8) for qt in range(4) for ks in range(2)]
    for ks, dt, qt in seq:
        o = (dt*4+qt)*4
        V = r('v', 64+4*(ks*8+dt), 4); P = r('v', 128+4*(ks*4+qt), 4)
        o_.append(f"{M16} {r('a',o,4)}, {P if swap else V}, {V if swap else P}, {r('a',o,4)}")
    return o_
names = []
for swap in (0, 1):
    for order, chain in (("d", 0), ("q", 0), ("d", 1)):
        nm = f"mb11_s{swap}_{order}{chain}.s"; g.gen(nm, pv(swap, order, chain), pre=pre); names.append(nm)
ones = [f"v_mov_b32 v{60+i}, 0x3f803f80" for i in range(4)]
one1 = ["v_and_b32 v8, 15, v1", "v_cmp_eq_u32 vcc, 0, v8", "v_mov_b32 v9, 0x3f803f80", "s_nop 1"] + [f"v_cndmask_b32 v{60+i}, 0, v9, vcc" for i in range(4)]
sm = [f"{M16} {r('a',(k%4)*4,4)}, v[60:63], {r('v',128+4*(k%8),4)}, {r('a',(k%4)*4,4)}" for k in range(64)]
g.gen("mb11_ones.s", sm, pre=pre+ones); g.gen("mb11_one1.s", sm, pre=pre+one1); names += ["mb11_ones.s", "mb11_one1.s", "mb2_c.s", "mb2_c0.s"]
print(" ".join(names))
```
